```python
import torch

def _softmax(x, axis=-1):
    return torch.softmax(x, dim=axis)
def _gelu(x):
    return torch.nn.functional.gelu(x, approximate="tanh")
def _silu(x):
    return torch.nn.functional.silu(x)
def _sigmoid(x):
    return torch.sigmoid(x)
def _layernorm(x, axis=-1, eps=1e-5):
    m = x.mean(dim=axis, keepdim=True)
    v = x.var(dim=axis, keepdim=True, unbiased=False)
    return (x - m) / torch.sqrt(v + eps)
def _scatter_add(tgt, idx, src, axis=0):
    return tgt.clone().index_add_(axis, idx, src)
def _segment_sum(src, seg, n):
    out = torch.zeros((n,) + src.shape[1:], dtype=src.dtype)
    return out.index_add_(0, seg, src)
def _pad(x, pw):
    flat = tuple(v for pair in reversed(pw) for v in pair)
    return torch.nn.functional.pad(x, flat)

kernel_name = 'standalone__spectral_fnet__prompt'

def setup_inputs():

    _w = (lambda a: (lambda t: t.to(torch.bfloat16) if t.is_floating_point() else t)(torch.as_tensor(a)))
    B, S, D = 1, 2048, 448
    ns = torch.arange(S)[:, None] * torch.arange(S)[None, :]
    nd = torch.arange(D)[:, None] * torch.arange(D)[None, :]
    Ws_re = torch.cos(-2.0 * torch.pi * ns / S).to(float)
    Ws_im = torch.sin(-2.0 * torch.pi * ns / S).to(float)
    Wd_re = torch.cos(-2.0 * torch.pi * nd / D).to(float)
    Wd_im = torch.sin(-2.0 * torch.pi * nd / D).to(float)
    return {
        "x": _w((lambda *s: torch.randn(*s, dtype=torch.bfloat16) * 0.05)(B, S, D)),
        "dft_seq_re": _w(Ws_re),
        "dft_seq_im": _w(Ws_im),
        "dft_hid_re": _w(Wd_re),
        "dft_hid_im": _w(Wd_im),
    }

def reference(x, dft_seq_re, dft_seq_im, dft_hid_re, dft_hid_im):
    a = torch.einsum("bsd,ed->bse", x, dft_hid_re)
    b = torch.einsum("bsd,ed->bse", x, dft_hid_im)
    y = torch.einsum("ts,bse->bte", dft_seq_re, a) - torch.einsum("ts,bse->bte", dft_seq_im, b)
    return y
```

```python
import sys

class Em:
    def __init__(self):
        self.lines = []
        self.vm = []
        self.lg = []
    def __call__(self, s):
        self.lines.append("    " + s)
    def label(self, s):
        self.lines.append(s + ":")
    def comment(self, s):
        self.lines.append("    ; " + s)
    def vmem(self, s, tag):
        self(s); self.vm.append(tag)
    def lds(self, s, tag):
        self(s); self.lg.append(tag)
    def wait_vm(self, tags):
        idx = [i for i, t in enumerate(self.vm) if t in tags]
        if not idx: return
        last = max(idx)
        n = len(self.vm) - 1 - last
        n = min(n, 63)
        self(f"s_waitcnt vmcnt({n})")
        self.vm = self.vm[len(self.vm) - n:] if n > 0 else []
    def wait_lg(self, tags):
        idx = [i for i, t in enumerate(self.lg) if t in tags]
        if not idx: return
        last = max(idx)
        n = len(self.lg) - 1 - last
        n = min(n, 15)
        self(f"s_waitcnt lgkmcnt({n})")
        self.lg = self.lg[len(self.lg) - n:] if n > 0 else []
    def wait_lg_all(self):
        self("s_waitcnt lgkmcnt(0)"); self.lg = []
    def wait_vm_all(self):
        self("s_waitcnt vmcnt(0)"); self.vm = []
    def text(self):
        return "\n".join(self.lines) + "\n"

def kdesc(name, vgpr, accum, sgpr=102):
    return f""".p2align 6
.amdhsa_kernel {name}
  .amdhsa_next_free_vgpr {vgpr}
  .amdhsa_next_free_sgpr {sgpr}
  .amdhsa_accum_offset {accum}
  .amdhsa_group_segment_fixed_size 0
  .amdhsa_kernarg_size 64
  .amdhsa_user_sgpr_count 2
  .amdhsa_user_sgpr_kernarg_segment_ptr 1
  .amdhsa_system_sgpr_workgroup_id_x 1
.end_amdhsa_kernel
"""

SLOT = 28672
NSLOT = 5
def gen_k1():
    e = Em()
    e.lines.append(".globl s1_kernel\n.p2align 8\n.type s1_kernel,@function\ns1_kernel:")
    e("s_cmp_ge_u32 s2, 256")
    e("s_cbranch_scc1 L_s1_done")
    e("s_load_dwordx4 s[4:7], s[0:1], 0")
    e("s_load_dwordx2 s[8:9], s[0:1], 16")
    e("s_load_dwordx2 s[10:11], s[0:1], 56")
    e("s_and_b32 s12, s2, 7")
    e("s_lshr_b32 s13, s2, 3")
    e("s_lshr_b32 s14, s13, 3")
    e("s_lshl_b32 s12, s12, 2")
    e("s_add_u32 s14, s14, s12")
    e("s_and_b32 s15, s13, 3")
    e("s_bfe_u32 s16, s13, 0x10002")
    e("v_lshrrev_b32 v1, 6, v0")
    e("v_and_b32 v0, 63, v0")
    e("v_readfirstlane_b32 s17, v1")
    e("v_and_b32 v2, 15, v0")
    e("v_lshlrev_b32 v2, 12, v2")
    e("v_lshrrev_b32 v3, 4, v0")
    e("v_lshl_add_u32 v2, v3, 4, v2")
    e("s_and_b32 s18, s17, 1")
    e("s_lshl_b32 s18, s18, 5")
    e("s_lshl_b32 s19, s14, 6")
    e("s_add_u32 s18, s18, s19")
    e("s_lshl_b32 s19, s18, 12")
    e("s_lshl_b32 s20, s16, 11")
    e("s_add_u32 s44, s19, s20")
    e("s_add_u32 s45, s44, 0x10000")
    for q in range(7):
        r = 4 + q
        e(f"v_add_u32 v11, {64*q}, v0")
        e(f"v_mul_u32_u24 v12, 4682, v11")
        e(f"v_lshrrev_b32 v12, 16, v12")
        e(f"v_mul_u32_u24 v13, 14, v12")
        e(f"v_sub_u32 v13, v11, v13")
        e(f"v_lshrrev_b32 v14, 2, v12")
        e(f"v_lshrrev_b32 v15, 3, v12")
        e(f"v_xor_b32 v14, v14, v15")
        e(f"v_and_b32 v14, 1, v14")
        e(f"v_mul_u32_u24 v14, 12, v14")
        e(f"v_xor_b32 v12, v12, v14")
        e(f"v_mul_u32_u24 v12, 896, v12")
        e(f"v_lshl_add_u32 v{r}, v13, 4, v12")
    e("s_lshl_b32 s20, s16, 10")
    e("s_lshl_b32 s21, s17, 5")
    e("s_add_u32 s20, s20, s21")
    e("s_mul_i32 s20, s20, 896")
    e("s_mul_i32 s21, s15, 224")
    e("s_add_u32 s46, s20, s21")
    e("s_mul_i32 s47, s17, 7168")
    e("v_bfe_u32 v11, v0, 2, 2")
    e("v_and_b32 v12, 1, v3")
    e("v_lshl_add_u32 v11, v12, 2, v11")
    e("v_lshrrev_b32 v12, 1, v3")
    e("v_lshl_add_u32 v11, v12, 4, v11")
    e("v_mul_u32_u24 v11, 224, v11")
    e("v_and_b32 v12, 3, v0")
    e("v_lshrrev_b32 v13, 1, v12")
    e("v_xor_b32 v13, v13, v12")
    e("v_and_b32 v13, 1, v13")
    e("v_lshl_add_u32 v14, v12, 4, v11")
    e("v_lshl_add_u32 v16, v13, 3, v14")
    e("v_xor_b32 v17, 8, v16")
    e("v_lshl_add_u32 v18, v12, 3, v11")
    e("v_add_u32 v18, 192, v18")
    for grp in (1, 2):
        for t in range(3):
            e(f"v_add_u32 v{16+3*grp+t}, {2*SLOT*grp}, v{16+t}")
    e("s_waitcnt lgkmcnt(0)")
    e("s_cmp_ge_u32 s17, 2")
    e("s_cselect_b32 s24, s8, s6")
    e("s_cselect_b32 s25, s9, s7")
    e("s_mov_b32 s26, 0x800000")
    e("s_mov_b32 s27, 0x00020000")
    e("s_mov_b32 s28, s4")
    e("s_mov_b32 s29, s5")
    e("s_mov_b32 s30, 1835008")
    e("s_mov_b32 s31, 0x00020000")
    e("s_mov_b32 s32, s10")
    e("s_mov_b32 s33, s11")
    e("s_mov_b32 s34, 0x10000000")
    e("s_mov_b32 s35, 0x00020000")
    ACC = 32
    XF = 88
    def acc(T, u): return ACC + (T*2+u)*4
    def xf(buf, T): return XF + buf*28 + T*4
    def dma(cc):
        slot = cc % NSLOT
        e(f"s_add_u32 s48, s46, {cc*128*896}")
        for q in range(7):
            e(f"s_add_u32 m0, s47, {slot*SLOT + q*1024}")
            e("s_nop 0")
            e.vmem(f"buffer_load_dwordx4 v{4+q}, s[28:31], s48 offen lds", ("x", cc))
    def cload(ks):
        for u in range(2):
            a = ks*8 + u*4
            e.vmem(f"buffer_load_dwordx4 a[{a}:{a+3}], v2, s[24:27], s{44+u} offen offset:{ks*64}", ("c", ks))
    for cc in range(4):
        dma(cc)
        for ks in range(4*cc, 4*cc+4): cload(ks)
    for r in range(56):
        e(f"v_mov_b32 v{ACC+r}, 0")
    def xread_list(ks):
        cc = ks // 4; kk = ks % 4; slot = cc % NSLOT
        grp = slot // 2; base = (slot % 2) * SLOT + kk * 7168
        out = []
        buf = ks & 1
        for T in range(7):
            p = T // 2
            typ = 2 if T == 6 else (T & 1)
            for h in range(2):
                off = base + h*1792 + (64*p if T < 6 else 0)
                d = xf(buf, T) + 2*h
                out.append((f"ds_read_b64_tr_b16 v[{d}:{d+1}], v{16+3*grp+typ} offset:{off}", ("xf", ks, T)))
        return out
    e.wait_vm({("x", 0)})
    e("s_barrier")
    for s, tag in xread_list(0): e.lds(s, tag)
    for ks in range(32):
        cc = ks // 4; kk = ks % 4
        nxt = xread_list(ks+1) if ks < 31 else []
        boundary = (kk == 3 and ks < 31)
        extra = []
        if cc + 4 < 8:
            extra.append(("c", 4*(cc+4) + kk))
        e.wait_vm({("c", ks)})
        slot_i = 0
        ri = 0
        mf = [(T, u) for T in range(7) for u in range(2)]
        for mi, (T, u) in enumerate(mf):
            if u == 0:
                e.wait_lg({("xf", ks, T)})
            a = ks*8 + u*4
            x = xf(ks & 1, T)
            e(f"v_mfma_f32_16x16x32_bf16 v[{acc(T,u)}:{acc(T,u)+3}], v[{x}:{x+3}], a[{a}:{a+3}], v[{acc(T,u)}:{acc(T,u)+3}]")
            if boundary:
                if mi == 5:
                    e.wait_lg_all()
                    e.wait_vm({("x", cc+1)})
                    e("s_barrier")
                    if cc == 0:
                        pass
                if mi >= 6:
                    for _ in range(2):
                        if ri < len(nxt):
                            e.lds(*nxt[ri]); ri += 1
                if mi == 13 and cc + 5 < 8:
                    dma(cc + 5)
            else:
                if ri < len(nxt):
                    e.lds(*nxt[ri]); ri += 1
            if mi == 2:
                for kind, val in extra:
                    cload(val)
            if ks == 0 and mi == 8:
                dma(4)
        while ri < len(nxt):
            e.lds(*nxt[ri]); ri += 1
    e("s_nop 7")
    e("s_nop 7")
    e("s_mov_b32 vcc_lo, 0xffff0000")
    e("s_mov_b32 vcc_hi, 0x0000ffff")
    e("s_lshr_b32 s20, s17, 1")
    e("s_lshl_b32 s21, s16, 1")
    e("s_add_u32 s20, s20, s21")
    e("s_lshl_b32 s20, s20, 7")
    e("s_lshl_b32 s21, s14, 2")
    e("s_add_u32 s20, s20, s21")
    e("s_and_b32 s21, s17, 1")
    e("s_lshl_b32 s21, s21, 1")
    e("s_add_u32 s20, s20, s21")
    e("s_mul_i32 s20, s20, 14")
    e("s_lshr_b32 s21, s15, 1")
    e("s_mul_i32 s21, s21, 7")
    e("s_add_u32 s20, s20, s21")
    e("s_and_b32 s21, s15, 1")
    e("s_mul_i32 s22, s21, 3")
    e("s_add_u32 s22, s22, s20")
    e("s_lshl_b32 s22, s22, 10")
    e("s_add_u32 s23, s22, 14336")
    e("s_add_u32 s20, s20, 6")
    e("s_lshl_b32 s20, s20, 10")
    e("s_lshl_b32 s21, s21, 3")
    e("s_add_u32 s20, s20, s21")
    e("s_add_u32 s21, s20, 14336")
    e("v_lshlrev_b32 v2, 4, v0")
    tmp = XF
    for u in range(2):
        for p in range(3):
            a = acc(2*p, u); b = acc(2*p+1, u)
            t = tmp; tmp += 8
            e(f"v_cvt_pk_bf16_f32 v{t}, v{a}, v{a+1}")
            e(f"v_cvt_pk_bf16_f32 v{t+1}, v{a+2}, v{a+3}")
            e(f"v_cvt_pk_bf16_f32 v{t+2}, v{b}, v{b+1}")
            e(f"v_cvt_pk_bf16_f32 v{t+3}, v{b+2}, v{b+3}")
            e(f"v_cndmask_b32 v{t+4}, v{t}, v{t+2}, vcc")
            e(f"v_cndmask_b32 v{t+5}, v{t+1}, v{t+3}, vcc")
            e(f"v_cndmask_b32 v{t+6}, v{t+2}, v{t}, vcc")
            e(f"v_cndmask_b32 v{t+7}, v{t+3}, v{t+1}, vcc")
            e.vmem(f"buffer_store_dwordx4 v[{t+4}:{t+7}], v2, s[32:35], s{22+u} offen offset:{p*1024}", ("st",))
        a = acc(6, u)
        t = tmp; tmp += 2
        e(f"v_cvt_pk_bf16_f32 v{t}, v{a}, v{a+1}")
        e(f"v_cvt_pk_bf16_f32 v{t+1}, v{a+2}, v{a+3}")
        e.vmem(f"buffer_store_dwordx2 v[{t}:{t+1}], v2, s[32:35], s{20+u} offen", ("st",))
    e.label("L_s1_done")
    e("s_endpgm")
    return e.text()

def gen_k2():
    e = Em()
    e.lines.append(".globl s2_kernel\n.p2align 8\n.type s2_kernel,@function\ns2_kernel:")
    e("s_cmp_ge_u32 s2, 256")
    e("s_cbranch_scc1 L_s2_done")
    e("s_load_dwordx4 s[4:7], s[0:1], 24")
    e("s_load_dwordx2 s[8:9], s[0:1], 40")
    e("s_load_dwordx2 s[10:11], s[0:1], 56")
    e("s_and_b32 s12, s2, 7")
    e("s_lshr_b32 s13, s2, 3")
    e("s_lshr_b32 s14, s13, 2")
    e("s_lshl_b32 s12, s12, 3")
    e("s_add_u32 s14, s14, s12")
    e("s_and_b32 s15, s13, 3")
    e("v_lshrrev_b32 v1, 6, v0")
    e("v_and_b32 v0, 63, v0")
    e("v_readfirstlane_b32 s17, v1")
    e("v_lshlrev_b32 v2, 4, v0")
    e("v_add_u32 v3, 4096, v2")
    e("v_lshrrev_b32 v4, 4, v0")
    e("v_and_b32 v5, 3, v0")
    e("v_bfe_u32 v6, v0, 2, 2")
    e("v_lshl_add_u32 v7, v6, 3, v5")
    e("v_mul_u32_u24 v7, 896, v7")
    e("v_and_b32 v8, 15, v0")
    e("v_add_u32 v8, 96, v8")
    e("v_mul_u32_u24 v8, 896, v8")
    for T in range(7):
        if T < 6:
            add = (32*(T//2) + 4*(T&1)) * 896
            e(f"v_add_u32 v9, {add}, v7")
        else:
            e("v_mov_b32 v9, v8")
        e(f"v_lshl_add_u32 v{10+T}, v4, 4, v9")
        e(f"v_lshl_add_u32 v{17+T}, v4, 3, v9")
    e("s_lshr_b32 s18, s17, 1")
    e("s_and_b32 s19, s17, 1")
    e("s_mul_i32 s20, s15, 100352")
    e("s_mul_i32 s21, s19, 448")
    e("s_add_u32 s40, s20, s21")
    e("s_lshl_b32 s20, s18, 7")
    e("s_lshl_b32 s21, s14, 1")
    e("s_add_u32 s20, s20, s21")
    e("s_mul_i32 s20, s20, 14336")
    e("s_mul_i32 s21, s19, 7168")
    e("s_add_u32 s44, s20, s21")
    e("s_add_u32 s45, s44, 14336")
    e(f"s_add_u32 s46, s44, {256*14336}")
    e("s_add_u32 s47, s46, 14336")
    e("s_waitcnt lgkmcnt(0)")
    e("s_cmp_ge_u32 s17, 2")
    e("s_cselect_b32 s24, s6, s4")
    e("s_cselect_b32 s25, s7, s5")
    e("s_mov_b32 s26, 401408")
    e("s_mov_b32 s27, 0x00020000")
    e("s_mov_b32 s28, s8")
    e("s_mov_b32 s29, s9")
    e("s_mov_b32 s30, 1835008")
    e("s_mov_b32 s31, 0x00020000")
    e("s_mov_b32 s32, s10")
    e("s_mov_b32 s33, s11")
    e("s_mov_b32 s34, 0x10000000")
    e("s_mov_b32 s35, 0x00020000")
    ACC = 32
    PF = 88
    def acc(T, u): return ACC + (T*2+u)*4
    def pf(s, kp, u): return PF + ((s*2+kp)*2+u)*4
    def hf(s, T): return (s*7+T)*4
    def loads(s):
        for kp in range(2):
            for u in range(2):
                r = pf(s, kp, u)
                e.vmem(f"buffer_load_dwordx4 v[{r}:{r+3}], v{2 + (s>>2)}, s[32:35], s{44+kp*2+u} offen offset:{(s&3)*1024}", ("p", s))
        for T in range(7):
            r = hf(s, T)
            if s < 6:
                off = 224*(s//3) + 64*(s%3)
                e.vmem(f"buffer_load_dwordx4 a[{r}:{r+3}], v{10+T}, s[24:27], s40 offen offset:{off}", ("h", s, T))
            else:
                e.vmem(f"buffer_load_dwordx2 a[{r}:{r+1}], v{17+T}, s[24:27], s40 offen offset:192", ("h", s, T))
                e.vmem(f"buffer_load_dwordx2 a[{r+2}:{r+3}], v{17+T}, s[24:27], s40 offen offset:{224+192}", ("h", s, T))
    for s in range(5): loads(s)
    for r in range(56):
        e(f"v_mov_b32 v{ACC+r}, 0")
    for s in range(7):
        if s == 0: loads(5)
        if s == 1: loads(6)
        for T in range(7):
            e.wait_vm({("p", s), ("h", s, T)})
            for kp in range(2):
                for u in range(2):
                    h = hf(s, T); p = pf(s, kp, u)
                    e(f"v_mfma_f32_16x16x32_bf16 v[{acc(T,u)}:{acc(T,u)+3}], a[{h}:{h+3}], v[{p}:{p+3}], v[{acc(T,u)}:{acc(T,u)+3}]")
    e("s_nop 7")
    e("s_nop 7")
    e("s_mul_i32 s20, s17, 14336")
    e("v_add_u32 v4, s20, v2")
    for T in range(7):
        for u in range(2):
            a = acc(T, u)
            e.lds(f"ds_write_b128 v4, v[{a}:{a+3}] offset:{(T*2+u)*1024}", ("w",))
    e.wait_lg_all()
    e("s_barrier")
    e("v_and_b32 v5, 15, v0")
    e("v_mul_u32_u24 v5, 896, v5")
    e("v_lshrrev_b32 v6, 4, v0")
    e("v_lshl_add_u32 v7, v6, 4, v5")
    e("v_lshl_add_u32 v8, v6, 3, v5")
    e("s_mul_i32 s20, s14, 28672")
    e("s_mul_i32 s21, s15, 224")
    e("s_add_u32 s20, s20, s21")
    e("s_add_u32 s21, s20, 14336")
    items = {0: [(0,0),(0,1)], 1: [(0,2),(1,0)], 2: [(1,1),(1,2)], 3: [(0,3),(1,3)]}
    for w in range(4):
        e(f"s_cmp_lg_u32 s17, {w}")
        e(f"s_cbranch_scc1 L_s2_skip{w}")
        for (u, p) in items[w]:
            tiles = [2*p, 2*p+1] if p < 3 else [6]
            base = 88
            for ti, T in enumerate(tiles):
                for ww in range(4):
                    r = base + (ti*4+ww)*4
                    e.lds(f"ds_read_b128 v[{r}:{r+3}], v2 offset:{ww*14336 + (T*2+u)*1024}", ("r",))
            e.wait_lg_all()
            for ti, T in enumerate(tiles):
                r = base + ti*16
                for q in range(4):
                    e(f"v_add_f32 v{r+q}, v{r+q}, v{r+4+q}")
                    e(f"v_add_f32 v{r+8+q}, v{r+8+q}, v{r+12+q}")
                    e(f"v_sub_f32 v{r+q}, v{r+q}, v{r+8+q}")
                e(f"v_cvt_pk_bf16_f32 v{128+2*ti}, v{r}, v{r+1}")
                e(f"v_cvt_pk_bf16_f32 v{128+2*ti+1}, v{r+2}, v{r+3}")
            if p < 3:
                e(f"buffer_store_dwordx4 v[128:131], v7, s[28:31], s{20+u} offen offset:{64*p}")
            else:
                e(f"buffer_store_dwordx2 v[128:129], v8, s[28:31], s{20+u} offen offset:192")
            e("s_nop 1")
        e("s_branch L_s2_done")
        e.label(f"L_s2_skip{w}")
    e.label("L_s2_done")
    e("s_endpgm")
    return e.text()

hdr = open("standalone__spectral_fnet__prompt.s.ref").read().split("; Override")[0]
out = hdr
out += f"; @launch kernel=s1_kernel grid=(256,1,1) block=(256,1,1) lds={SLOT*NSLOT}\n"
out += f"; @launch kernel=s2_kernel grid=(256,1,1) block=(256,1,1) lds=57344\n"
out += '.amdgcn_target "amdgcn-amd-amdhsa--gfx950"\n.text\n'
out += gen_k1() + gen_k2()
out += '.section .rodata,"a"\n'
out += kdesc("s1_kernel", 512, 256) + kdesc("s2_kernel", 512, 256)
open(sys.argv[1] if len(sys.argv) > 1 else "v1.s", "w").write(out)
```

```python
import sys
def opt(name, default):
    for a in sys.argv:
        if a.startswith(f"--{name}="): return type(default)(a.split("=")[1])
    return default
STAMP = '--stamp' in sys.argv
FIXOFF = int('--fixoff' in sys.argv)
NTC = opt("ntc", 1)
TOUCHH = opt("touchh", 1)
SLEEP = opt("sleep", 8)
RAMP = opt("ramp", 4)
QROT2 = opt("qrot2", 1)
NOLOAD = opt("noload", 0)
PLD = opt("pld", "sc1")
PST = opt("pst", "sc1")
CHKST = opt("chkst", 9)
TCHST = opt("tchst", 8)
FRONT = opt("front", 0)
BARP = opt("barp", 3)
WGRP = opt("wgrp", 1)
NOBAR = opt("nobar", 0)

class Em:
    def __init__(self):
        self.lines = []; self.vm = []; self.lg = []; self.nst = 0
    def __call__(self, s): self.lines.append("    " + s)
    def label(self, s): self.lines.append(s + ":")
    def vmem(self, s, tag): self(s); self.vm.append(tag)
    def lds(self, s, tag): self(s); self.lg.append(tag)
    def wait_vm(self, tags):
        idx = [i for i, t in enumerate(self.vm) if t in tags]
        if not idx: return
        n = min(len(self.vm) - 1 - max(idx), 63)
        self(f"s_waitcnt vmcnt({n})")
        self.vm = self.vm[len(self.vm) - n:] if n > 0 else []
    def wait_lg(self, tags):
        idx = [i for i, t in enumerate(self.lg) if t in tags]
        if not idx: return
        n = min(len(self.lg) - 1 - max(idx), 15)
        self(f"s_waitcnt lgkmcnt({n})")
        self.lg = self.lg[len(self.lg) - n:] if n > 0 else []
    def wait_lg_all(self): self("s_waitcnt lgkmcnt(0)"); self.lg = []
    def wait_vm_all(self): self("s_waitcnt vmcnt(0)"); self.vm = []
    def stamp(self):
        if not STAMP: return
        self.nst += 1
        r = 58 + 2*self.nst
        assert r < 90
        self(f"s_memtime s[{r}:{r+1}]")
    def stamp_flush(self):
        if not STAMP: return
        self("s_memrealtime s[56:57]")
        self("s_waitcnt lgkmcnt(0)")
        self("s_lshl_b32 s50, s2, 3")
        self("s_add_u32 s50, s50, s17")
        self("s_lshl_b32 s50, s50, 8")
        self(f"s_add_u32 s50, s50, {0x1000000}")
        self("v_mov_b32 v1, 0")
        regs = [54, 56] + [58 + 2*i for i in range(1, self.nst+1)]
        for i, r in enumerate(regs):
            self(f"v_mov_b32 v3, s{r}")
            self(f"buffer_store_dword v3, v1, s[32:35], s50 offen offset:{4*i}")
            self("s_nop 1")
    def text(self): return "\n".join(self.lines) + "\n"

SLOT = 32768; XOFF = 16384; NSLOT = 5
HST = 14336
HPOSN = [32768 + n*HST for n in range(9)] + [0, HST] + [32768, 32768 + HST, 32768 + 2*HST]
def hbar(pos):
    a = HPOSN[pos]; b = a + HST - 1
    need = 0
    for sl in range(a // SLOT, b // SLOT + 1):
        last = max(st for st in range(16) if st % NSLOT == sl)
        need = max(need, last + 1)
    return need
FLAGBASE = 0xF000000
NAME = "standalone__spectral_fnet__prompt_kernel"

def srds(e):
    e("s_mov_b32 s28, s4"); e("s_mov_b32 s29, s5"); e("s_mov_b32 s30, 1835008"); e("s_mov_b32 s31, 0x00020000")
    e("s_mov_b32 s32, s42"); e("s_mov_b32 s33, s43"); e("s_mov_b32 s34, 0x10000000"); e("s_mov_b32 s35, 0x00020000")
    e("s_mov_b32 s20, s38"); e("s_mov_b32 s21, s39"); e("s_mov_b32 s22, 1835008"); e("s_mov_b32 s23, 0x00020000")
    e("s_mov_b32 s46, 401408"); e("s_mov_b32 s47, 0x00020000")
    e("s_mov_b32 s44, s10"); e("s_mov_b32 s45, s11")

def rot2(e, dst):
    if QROT2:
        e(f"s_mul_i32 s{dst}, s15, 7")
        e(f"s_add_u32 s{dst}, s{dst}, 1")
        e(f"s_lshr_b32 s{dst}, s{dst}, 1")
    else:
        e(f"s_mov_b32 s{dst}, 0")

def gen():
    e = Em()
    e.lines.append(f".globl {NAME}\n.p2align 8\n.type {NAME},@function\n{NAME}:")
    e("s_cmp_ge_u32 s2, 256")
    e("s_cbranch_scc1 L_done")
    e("s_load_dwordx8 s[4:11], s[0:1], 0")
    e("s_load_dwordx8 s[36:43], s[0:1], 32")
    if STAMP: e("s_memrealtime s[54:55]")
    e.stamp()
    e("v_lshrrev_b32 v1, 6, v0")
    e("v_and_b32 v0, 63, v0")
    e("v_readfirstlane_b32 s17, v1")
    e("s_lshr_b32 s13, s2, 3")
    e("s_and_b32 s15, s13, 3")
    e("s_and_b32 s16, s2, 1")
    e("s_bfe_u32 s14, s2, 0x20001")
    e("s_lshl_b32 s14, s14, 3")
    e("s_lshr_b32 s12, s13, 2")
    e("s_add_u32 s14, s14, s12")
    e("s_lshl_b32 s90, s15, 2")
    e("s_lshr_b32 s12, s15, 1")
    e("s_lshl_b32 s12, s12, 1")
    e("s_sub_u32 s90, s90, s12")
    e("v_lshrrev_b32 v3, 4, v0")
    e("v_lshlrev_b32 v2, 4, v0")
    e("s_cmp_ge_u32 s17, 4")
    e("s_cbranch_scc1 L_loader")
    e("s_lshr_b32 s18, s17, 1")
    e("s_and_b32 s19, s17, 1")
    AD = 16
    e("v_and_b32 v11, 15, v0")
    e("v_lshrrev_b32 v12, 1, v11")
    e("v_xor_b32 v12, v12, v3")
    e("v_lshlrev_b32 v12, 4, v12")
    e("v_lshl_add_u32 v12, v11, 7, v12")
    e("s_lshl_b32 s48, s17, 12")
    e(f"v_add_u32 v{AD}, s48, v12")
    e(f"v_xor_b32 v{AD+1}, 64, v{AD}")
    e("v_bfe_u32 v11, v0, 2, 2")
    e("v_lshl_add_u32 v12, v3, 3, v11")
    e("v_lshlrev_b32 v12, 8, v12")
    e(f"v_add_u32 v12, {XOFF}, v12")
    e("v_and_b32 v13, 3, v0")
    e("v_lshrrev_b32 v14, 1, v13")
    e("v_xor_b32 v14, v14, v13")
    e("v_and_b32 v14, 1, v14")
    e("v_lshl_add_u32 v12, v14, 3, v12")
    e("v_and_b32 v14, 1, v3")
    e("v_lshlrev_b32 v14, 1, v14")
    e("v_xor_b32 v13, v13, v14")
    e("v_lshl_add_u32 v13, v11, 2, v13")
    for p in range(4):
        e(f"v_xor_b32 v14, {4*p}, v13")
        e(f"v_lshl_add_u32 v{AD+2+p}, v14, 4, v12")
        e(f"v_xor_b32 v{AD+6+p}, 8, v{AD+2+p}")
    for grp in (1, 2):
        for t in range(10):
            e(f"v_add_u32 v{AD+10*grp+t}, {2*SLOT*grp}, v{AD+t}")
    ACC = 48; FR = 112
    def acc(T, u): return ACC + (T*2+u)*4
    def xf(buf, T): return FR + buf*40 + T*4
    def cf(buf, u): return FR + buf*40 + 32 + u*4
    for r in range(64):
        e(f"v_mov_b32 v{ACC+r}, 0")
    e("v_mov_b32 v12, 0")
    e("v_mov_b32 v13, 1")
    e("v_mov_b32 v14, 0")
    e("v_mov_b32 v15, 0")
    e("s_waitcnt lgkmcnt(0)")
    srds(e)
    e("s_mov_b32 s48, s40"); e("s_mov_b32 s49, s41"); e("s_mov_b32 s50, 256"); e("s_mov_b32 s51, 0x00020000")
    e("s_lshl_b32 s52, s14, 7")
    e(f"s_add_u32 s52, s52, {FLAGBASE}")
    e("s_lshl_b32 s53, s16, 2")
    e("s_add_u32 s53, s53, s15")
    e("s_or_b32 s12, s53, s17")
    e("s_cmp_lg_u32 s12, 0")
    e("s_cbranch_scc1 L_noclear")
    e("s_mov_b64 exec, 1")
    e("buffer_store_dwordx2 v[14:15], v12, s[32:35], s52 offen sc1")
    e("s_waitcnt vmcnt(0)")
    e("buffer_store_byte v13, v12, s[48:51], s14 offen sc1")
    e("s_mov_b64 exec, -1")
    e.label("L_noclear")
    e("s_add_u32 s53, s53, s52")
    if TOUCHH:
        e("s_lshl_b32 s12, s13, 2")
        e("s_add_u32 s12, s12, s17")
        e("s_and_b32 s3, s12, 63")
        e("s_mul_i32 s3, s3, 6272")
        e("s_cmp_ge_u32 s12, 64")
        e("s_cselect_b32 s44, s36, s10")
        e("s_cselect_b32 s45, s37, s11")
        e("v_lshlrev_b32 v4, 7, v0")
        e("v_min_u32 v4, 6144, v4")
    e("s_lshl_b32 s24, s16, 1")
    e("s_add_u32 s24, s24, s18")
    e("s_lshl_b32 s24, s24, 7")
    e("s_lshl_b32 s12, s14, 2")
    e("s_add_u32 s24, s24, s12")
    e("s_lshl_b32 s12, s19, 1")
    e("s_add_u32 s24, s24, s12")
    e("s_mul_i32 s24, s24, 14")
    e("s_add_u32 s24, s24, s90")
    e("s_lshl_b32 s24, s24, 10")
    e("s_add_u32 s25, s24, 14336")
    e("s_cmp_eq_u32 s15, 2")
    e("s_cselect_b32 s26, 0x7f000000, s24")
    e("s_cselect_b32 s27, 0x7f000000, s25")
    e("s_cmp_eq_u32 s15, 1")
    e("s_cselect_b32 s92, 0x7f000000, s24")
    e("s_cselect_b32 s93, 0x7f000000, s25")
    e("s_cmp_eq_u32 s18, 1")
    e("s_cselect_b32 s12, 0x80008000, 0")
    e("s_mov_b32 vcc_lo, 0xffff0000")
    e("s_mov_b32 vcc_hi, 0x0000ffff")
    def reads(ks):
        st = ks // 2; kk = ks & 1
        slot = st % NSLOT; grp = slot // 2; base = (slot % 2) * SLOT
        buf = ks & 1
        out = []
        def xr(T):
            p = T // 2
            reg = AD + 10*grp + 2 + 4*(T & 1) + p
            for h in range(2):
                off = base + kk*8192 + h*1024
                d = xf(buf, T) + 2*h
                out.append((f"ds_read_b64_tr_b16 v[{d}:{d+1}], v{reg} offset:{off}", ("f", ks, "x", T)))
        def cr(u):
            d = cf(buf, u)
            out.append((f"ds_read_b128 v[{d}:{d+3}], v{AD+10*grp+kk} offset:{base + u*2048}", ("f", ks, "c", u)))
        xr(0); cr(0); cr(1)
        for T in range(1, 8): xr(T)
        return out
    e.stamp()
    e("s_barrier")
    e.stamp()
    for s_, tag in reads(0): e.lds(s_, tag)
    for ks in range(32):
        st = ks // 2; kk = ks & 1
        nxt = reads(ks+1) if ks < 31 else []
        ri = 0; mi = 0
        BARPOS = BARP if kk == 1 else -1
        for T in range(8):
            for u in range(2):
                Tw = min(7, (T // WGRP) * WGRP + WGRP - 1)
                e.wait_lg({("f", ks, "x", Tw), ("f", ks, "c", 1)})
                x = xf(ks & 1, T); c = cf(ks & 1, u); a = acc(T, u)
                e(f"v_mfma_f32_16x16x32_bf16 v[{a}:{a+3}], v[{x}:{x+3}], v[{c}:{c+3}], v[{a}:{a+3}]")
                if mi == BARPOS:
                    e.wait_lg_all()
                    e("s_barrier")
                    if st % 4 == 3: e.stamp()
                    if st == TCHST and TOUCHH:
                        e(f"buffer_load_dword v10, v4, s[44:47], s3 offen")
                    if st == CHKST:
                        e("s_cmp_lg_u32 s17, 0")
                        e("s_cbranch_scc1 L_nochk")
                        e("buffer_load_ubyte v9, v12, s[48:51], s14 offen sc1")
                        e.label("L_nochk")
                if mi >= BARPOS and ri < len(nxt):
                    rem_slots = 16 - mi
                    k_ = -(-(len(nxt) - ri) // max(rem_slots - 2, 1))
                    if FRONT: k_ = FRONT
                    for _ in range(min(k_, 3)):
                        if ri < len(nxt):
                            e.lds(*nxt[ri]); ri += 1
                mi += 1
        while ri < len(nxt):
            e.lds(*nxt[ri]); ri += 1
    e.stamp()
    e("s_nop 7")
    tmp = 192
    for uu in range(2):
        for p in range(4):
            t = tmp; tmp += 8
            a = acc(2*p, uu); b = acc(2*p+1, uu)
            e(f"v_cvt_pk_bf16_f32 v{t}, v{a}, v{a+1}")
            e(f"v_cvt_pk_bf16_f32 v{t+1}, v{a+2}, v{a+3}")
            e(f"v_cvt_pk_bf16_f32 v{t+2}, v{b}, v{b+1}")
            e(f"v_cvt_pk_bf16_f32 v{t+3}, v{b+2}, v{b+3}")
            for r in range(4): e(f"v_xor_b32 v{t+r}, s12, v{t+r}")
            e(f"v_cndmask_b32 v{t+4}, v{t}, v{t+2}, vcc")
            e(f"v_cndmask_b32 v{t+5}, v{t+1}, v{t+3}, vcc")
            e(f"v_cndmask_b32 v{t+6}, v{t+2}, v{t}, vcc")
            e(f"v_cndmask_b32 v{t+7}, v{t+3}, v{t+1}, vcc")
            so = {0: 26, 3: 92}.get(p, 24) + uu
            e(f"buffer_store_dwordx4 v[{t+4}:{t+7}], v2, s[32:35], s{so} offen offset:{p*1024} {PST}")
    e.stamp()
    A2 = 32; PF = 88; HF = 200
    def acc2(T, u): return A2 + (T*2+u)*4
    for r in range(56):
        e(f"v_mov_b32 v{A2+r}, 0")
    e("v_and_b32 v4, 15, v0")
    e("v_lshrrev_b32 v5, 1, v4")
    e("s_lshl_b32 s24, s19, 2")
    e("v_add_u32 v6, s24, v3")
    e("v_xor_b32 v5, v5, v6")
    e("v_lshlrev_b32 v5, 4, v5")
    e("v_lshl_add_u32 v16, v4, 7, v5")
    for g_ in (1, 2, 3):
        e(f"v_add_u32 v{16+g_}, {49152*g_}, v16")
    e("s_lshl_b32 s24, s14, 2")
    e("s_lshl_b32 s25, s16, 1")
    e("s_add_u32 s24, s24, s25")
    e("s_mul_i32 s24, s24, 14336")
    e("s_lshl_b32 s25, s19, 10")
    e("s_add_u32 s24, s24, s25")
    rot2(e, 26)
    e("s_add_u32 s26, s26, s18")
    for idx in range(7):
        e(f"s_add_u32 s25, s26, {2*idx}")
        e("s_sub_u32 s27, s25, 14")
        e("s_cmp_ge_u32 s25, 14")
        e("s_cselect_b32 s25, s27, s25")
        e("s_sub_u32 s27, s25, 7")
        e("s_cmp_ge_u32 s25, 7")
        e("s_cselect_b32 s25, s27, s25")
        e(f"s_cselect_b32 s27, {128*14336}, 0")
        e("s_lshl_b32 s25, s25, 11")
        e("s_add_u32 s25, s25, s27")
        e(f"s_add_u32 s{91+idx}, s25, s24")
    e.wait_vm_all()
    e.stamp()
    e("s_barrier")
    e("s_cmp_lg_u32 s17, 0")
    e("s_cbranch_scc1 L_nopoll")
    e("s_mov_b64 exec, 1")
    e("s_mov_b32 s3, 0")
    e.label("L_chk")
    e("v_readfirstlane_b32 s12, v9")
    e("s_cmp_eq_u32 s12, 1")
    e("s_cbranch_scc1 L_chkok")
    e("s_sleep 8")
    e("buffer_load_ubyte v9, v12, s[48:51], s14 offen sc1")
    e("s_add_u32 s3, s3, 1")
    e("s_cmp_gt_u32 s3, 0x40000")
    e("s_waitcnt vmcnt(0)")
    e("s_cbranch_scc0 L_chk")
    e.label("L_chkok")
    e("buffer_store_byte v13, v12, s[32:35], s53 offen sc1")
    e.label("L_poll")
    e("buffer_load_dwordx2 v[14:15], v12, s[32:35], s52 offen sc1")
    e("s_add_u32 s3, s3, 1")
    e("s_waitcnt vmcnt(0)")
    e("v_and_b32 v14, v14, v15")
    e("s_cmp_gt_u32 s3, 0x40000")
    e("v_readfirstlane_b32 s12, v14")
    e("s_cbranch_scc1 L_pollx")
    e("s_cmp_eq_u32 s12, 0x01010101")
    e("s_cbranch_scc1 L_pollx")
    if SLEEP: e(f"s_sleep {SLEEP}")
    e("s_branch L_poll")
    e.label("L_pollx")
    e("s_mov_b64 exec, -1")
    e.label("L_nopoll")
    e("s_barrier")
    e.stamp()
    e.vm = []; e.lg = []
    for idx in range(7):
        for kp in range(2):
            for u in range(2):
                off = (kp*256 + u)*14336
                r = PF + (idx*4 + kp*2 + u)*4
                e(f"s_add_u32 s25, s{91+idx}, {off}")
                e.vmem(f"buffer_load_dwordx4 v[{r}:{r+3}], v2, s[32:35], s25 offen {PLD}", ("p", idx))
    e.stamp()
    vm_save = list(e.vm)
    for wh in range(2):
        if wh == 0:
            e("s_cmp_lg_u32 s18, 0")
            e("s_cbranch_scc1 L_s2b")
        else:
            e.label("L_s2b")
        e.vm = list(vm_save); e.lg = []
        def hreads(idx):
            a = HPOSN[wh + 2*idx]
            grp = a // 49152; ob = a - 49152*grp
            out = []
            for T in range(7):
                d = HF + (idx & 1)*28 + T*4
                out.append((f"ds_read_b128 v[{d}:{d+3}], v{16+grp} offset:{ob + T*2048}", ("h", idx, T)))
            return out
        d19 = d20 = False
        for s_, tag in hreads(0): e.lds(s_, tag)
        for idx in range(7):
            npos = wh + 2*(idx+1) if idx < 6 else None
            if npos is not None and npos >= 3 and not d19:
                e.wait_lg_all()
                e("s_barrier"); d19 = True
            if npos is not None and npos >= 11 and not d20:
                e("s_barrier"); d20 = True
            e.wait_vm({("p", idx)})
            nxt = hreads(idx+1) if idx < 6 else []
            ri = 0
            for T in range(7):
                e.wait_lg({("h", idx, T)})
                h = HF + (idx & 1)*28 + T*4
                for kp in range(2):
                    for u in range(2):
                        p = PF + (idx*4 + kp*2 + u)*4; a = acc2(T, u)
                        e(f"v_mfma_f32_16x16x32_bf16 v[{a}:{a+3}], v[{h}:{h+3}], v[{p}:{p+3}], v[{a}:{a+3}]")
                        if ri < len(nxt) and kp == 1 and u == 0:
                            e.lds(*nxt[ri]); ri += 1
            while ri < len(nxt):
                e.lds(*nxt[ri]); ri += 1
        assert d19 and d20
        if wh == 0: e("s_branch L_s2_red")
    e.label("L_s2_red")
    e.vm = []; e.lg = []
    e.stamp()
    RS = 81920
    e("s_mul_i32 s48, s17, 14336")
    e(f"s_add_u32 s48, s48, {RS}")
    e("v_add_u32 v4, s48, v2")
    e(f"v_add_u32 v9, {RS}, v2")
    e("v_and_b32 v5, 15, v0")
    e("v_mul_u32_u24 v5, 896, v5")
    e("v_lshl_add_u32 v7, v3, 4, v5")
    e("v_lshl_add_u32 v8, v3, 3, v5")
    e("s_lshl_b32 s48, s14, 1")
    e("s_add_u32 s48, s48, s16")
    e("s_mul_i32 s48, s48, 28672")
    e("s_mul_i32 s49, s15, 224")
    e("s_add_u32 s48, s48, s49")
    e("s_add_u32 s49, s48, 14336")
    e("s_barrier")
    for T in range(7):
        for u in range(2):
            a = acc2(T, u)
            e(f"ds_write_b128 v4, v[{a}:{a+3}] offset:{(T*2+u)*1024}")
    e("s_waitcnt lgkmcnt(0)")
    e("s_barrier")
    items = {0: [(0,0),(0,1)], 1: [(0,2),(1,0)], 2: [(1,1),(1,2)], 3: [(0,3),(1,3)]}
    for w in range(4):
        e(f"s_cmp_lg_u32 s17, {w}")
        e(f"s_cbranch_scc1 L_fin{w}")
        for ii, (u, p) in enumerate(items[w]):
            tiles = [2*p, 2*p+1] if p < 3 else [6]
            base = 88 + ii*32
            for ti, T in enumerate(tiles):
                for ww in range(4):
                    r = base + (ti*4+ww)*4
                    e(f"ds_read_b128 v[{r}:{r+3}], v9 offset:{ww*14336 + (T*2+u)*1024}")
        e("s_waitcnt lgkmcnt(0)")
        for ii, (u, p) in enumerate(items[w]):
            tiles = [2*p, 2*p+1] if p < 3 else [6]
            base = 88 + ii*32
            o = 160 + ii*4
            for ti, T in enumerate(tiles):
                r = base + ti*16
                for q in range(4):
                    e(f"v_add_f32 v{r+q}, v{r+q}, v{r+4+q}")
                    e(f"v_add_f32 v{r+8+q}, v{r+8+q}, v{r+12+q}")
                for q in range(4):
                    e(f"v_add_f32 v{r+q}, v{r+q}, v{r+8+q}")
                e(f"v_cvt_pk_bf16_f32 v{o+2*ti}, v{r}, v{r+1}")
                e(f"v_cvt_pk_bf16_f32 v{o+2*ti+1}, v{r+2}, v{r+3}")
            if p < 3:
                e(f"buffer_store_dwordx4 v[{o}:{o+3}], v7, s[20:23], s{48+u} offen offset:{64*p}")
            else:
                e(f"buffer_store_dwordx2 v[{o}:{o+1}], v8, s[20:23], s{48+u} offen offset:192")
        e("s_branch L_end")
        e.label(f"L_fin{w}")
    e.label("L_loader")
    e.vm = []; e.lg = []
    nst_save = e.nst
    e.nst = 1
    e("s_sub_u32 s18, s17, 4")
    e("v_lshrrev_b32 v20, 3, v0")
    e("v_and_b32 v21, 7, v0")
    for q in range(8):
        e(f"v_add_u32 v22, {8*q}, v20")
        e(f"v_bfe_u32 v23, v22, 1, 3")
        e(f"v_xor_b32 v23, v23, v21")
        e(f"v_lshlrev_b32 v23, 4, v23")
        e(f"v_lshl_add_u32 v{4+q}, v22, 12, v23")
    e("s_lshl_b32 s48, s14, 18")
    e("s_lshl_b32 s49, s16, 11")
    e("s_add_u32 s48, s48, s49")
    e("s_lshl_b32 s49, s16, 10")
    e("s_lshl_b32 s50, s18, 5")
    e("s_add_u32 s49, s49, s50")
    e("s_mul_i32 s49, s49, 896")
    e("s_lshl_b32 s50, s90, 6")
    e("s_add_u32 s49, s49, s50")
    e("s_lshl_b32 s50, s18, 13")
    e(f"s_add_u32 s51, s50, {XOFF}")
    e("s_add_u32 s3, s14, s15")
    e("s_and_b32 s3, s3, 3")
    e("s_lshl_b32 s3, s3, 2")
    e("s_waitcnt lgkmcnt(0)")
    e("s_cmp_eq_u32 s18, 1")
    e("s_cselect_b32 s24, s8, s6")
    e("s_cselect_b32 s25, s9, s7")
    e("s_mov_b32 s26, 0x800000"); e("s_mov_b32 s27, 0x00020000")
    srds(e)
    ntc = " nt" if NTC else ""
    def stage_off(st):
        e(f"s_add_u32 s53, s3, {st}")
        e(f"s_and_b32 s53, s53, {3 if FIXOFF else 15}")
        e(f"s_lshl_b32 s52, s53, 7")
        e(f"s_add_u32 s52, s52, s48")
        e(f"s_mul_i32 s53, s53, {64*896}")
        e(f"s_add_u32 s53, s53, s49")
    def stage_c(st):
        slot = st % NSLOT
        if NOLOAD: return
        for q in range(8):
            e(f"s_add_u32 m0, s50, {slot*SLOT + q*1024}")
            e("s_nop 0")
            e.vmem(f"buffer_load_dwordx4 v{4+q}, s[24:27], s52 offen{ntc} lds", ("s", st))
    def stage_x(st):
        slot = st % NSLOT
        if NOLOAD: return
        for q in range(8):
            e(f"s_add_u32 m0, s51, {slot*SLOT + q*1024}")
            e("s_nop 0")
            e.vmem(f"buffer_load_dwordx4 v{12+q}, s[28:31], s53 offen lds", ("s", st))
    def stage(st):
        stage_off(st); stage_c(st); stage_x(st)
    stage_off(0); stage_c(0)
    e("v_and_b32 v22, 15, v0")
    e("v_lshlrev_b32 v23, 2, v3")
    e("v_xor_b32 v22, v22, v23")
    e("v_xor_b32 v24, 2, v22")
    e("v_mul_u32_u24 v23, 896, v3")
    e("v_lshl_add_u32 v22, v22, 4, v23")
    e("v_lshl_add_u32 v24, v24, 4, v23")
    for q in range(8):
        e(f"v_add_u32 v{12+q}, {4*q*896}, v{24 if (q>>1)&1 else 22}")
    stage_x(0)
    stage(1)
    e.stamp()
    e("s_lshl_b32 s12, s18, 3")
    e("v_add_u32 v27, s12, v20")
    for n in range(7):
        e(f"v_add_u32 v23, {16*n}, v27")
        e("v_bfe_u32 v24, v23, 1, 3")
        e("v_xor_b32 v24, v24, v21")
        if n < 6:
            e("v_bfe_u32 v25, v23, 2, 2")
            e("v_and_b32 v26, 3, v23")
            e("v_lshl_add_u32 v25, v25, 3, v26")
            e(f"v_add_u32 v23, {32*(n>>1) + 4*(n&1)}, v25")
        e("v_mul_u32_u24 v23, 896, v23")
        e(f"v_lshl_add_u32 v{32+n}, v24, 4, v23")
    e("s_mul_i32 s19, s15, 100352")
    e("s_lshl_b32 s12, s18, 10")
    rot2(e, 91)
    def hstage(pos):
        e(f"s_add_u32 s52, s91, {pos}")
        e("s_sub_u32 s53, s52, 14")
        e("s_cmp_ge_u32 s52, 14")
        e("s_cselect_b32 s52, s53, s52")
        e("s_sub_u32 s53, s52, 7")
        e("s_cmp_ge_u32 s52, 7")
        e("s_cselect_b32 s52, s53, s52")
        e("s_cselect_b32 s44, s36, s10")
        e("s_cselect_b32 s45, s37, s11")
        e("s_lshl_b32 s52, s52, 7")
        e("s_add_u32 s52, s52, s19")
        for n in range(7):
            e(f"s_add_u32 m0, s12, {HPOSN[pos] + n*2048}")
            e("s_nop 0")
            e.vmem(f"buffer_load_dwordx4 v{32+n}, s[44:47], s52 offen lds", ("h", pos))
    nxt = 2
    for b in range(17):
        if b < 16:
            e.wait_vm({("s", b)})
        e("s_barrier")
        tgt = b + 2 if b < RAMP else b + 4
        cnt = 0
        while nxt <= min(tgt, 15) and cnt < 2:
            stage(nxt); nxt += 1; cnt += 1
        for pos in range(11):
            if hbar(pos) == b: hstage(pos)
    assert nxt == 16
    e.stamp()
    e("s_barrier")
    e.wait_vm_all()
    e.stamp()
    e("s_barrier")
    e("s_barrier")
    hstage(11); hstage(12); hstage(13)
    e.wait_vm_all()
    e("s_barrier")
    e("s_barrier")
    e("s_barrier")
    e.label("L_end")
    if STAMP:
        e("s_waitcnt vmcnt(0)")
        e.nst = max(nst_save, e.nst)
        e.stamp()
        e.stamp_flush()
    e.label("L_done")
    e("s_endpgm")
    return e.text()

hdr = open("standalone__spectral_fnet__prompt.s.ref").read().split("; Override")[0]
out = hdr
out += f"; @launch grid=(256,1,1) block=(384,1,1) lds=163840\n"
out += '.amdgcn_target "amdgcn-amd-amdhsa--gfx950"\n.text\n'
out += gen()
out += f'''.section .rodata,"a"
.p2align 6
.amdhsa_kernel {NAME}
  .amdhsa_next_free_vgpr 256
  .amdhsa_next_free_sgpr 102
  .amdhsa_accum_offset 256
  .amdhsa_group_segment_fixed_size 0
  .amdhsa_kernarg_size 64
  .amdhsa_user_sgpr_count 2
  .amdhsa_user_sgpr_kernarg_segment_ptr 1
  .amdhsa_system_sgpr_workgroup_id_x 1
.end_amdhsa_kernel
'''
open(sys.argv[1], "w").write(out)
if '--info' in sys.argv:
    print([(p, HPOSN[p], hbar(p)) for p in range(14)])
```

```python
import sys
def opt(name, default):
    for a in sys.argv:
        if a.startswith(f"--{name}="): return type(default)(a.split("=")[1])
    return default
STAMP = '--stamp' in sys.argv
DBGT = '--dbgt' in sys.argv
FIXOFF = int('--fixoff' in sys.argv)
NTC = opt("ntc", 1)
TOUCHH = opt("touchh", 1)
SLEEP = opt("sleep", 8)
RAMP = opt("ramp", 4)
QROT2 = opt("qrot2", 1)
NOLOAD = opt("noload", 0)
PLD = opt("pld", "sc1")
PST = opt("pst", "sc1")
CHKST = opt("chkst", 9)
TCHST = opt("tchst", 8)
FRONT = opt("front", 0)
BARP = opt("barp", 3)
WGRP = opt("wgrp", 1)
NOBAR = opt("nobar", 0)

class Em:
    def __init__(self):
        self.lines = []; self.vm = []; self.lg = []; self.nst = 0
    def __call__(self, s): self.lines.append("    " + s)
    def label(self, s): self.lines.append(s + ":")
    def vmem(self, s, tag): self(s); self.vm.append(tag)
    def lds(self, s, tag): self(s); self.lg.append(tag)
    def wait_vm(self, tags):
        idx = [i for i, t in enumerate(self.vm) if t in tags]
        if not idx: return
        n = min(len(self.vm) - 1 - max(idx), 63)
        self(f"s_waitcnt vmcnt({n})")
        self.vm = self.vm[len(self.vm) - n:] if n > 0 else []
    def wait_lg(self, tags):
        idx = [i for i, t in enumerate(self.lg) if t in tags]
        if not idx: return
        n = min(len(self.lg) - 1 - max(idx), 15)
        self(f"s_waitcnt lgkmcnt({n})")
        self.lg = self.lg[len(self.lg) - n:] if n > 0 else []
    def wait_lg_all(self): self("s_waitcnt lgkmcnt(0)"); self.lg = []
    def wait_vm_all(self): self("s_waitcnt vmcnt(0)"); self.vm = []
    def stamp(self):
        if not STAMP: return
        self.nst += 1
        r = 58 + 2*self.nst
        assert r < 90
        self(f"s_memtime s[{r}:{r+1}]")
    def stamp_flush(self):
        if not STAMP: return
        self("s_memrealtime s[56:57]")
        self("s_waitcnt lgkmcnt(0)")
        self("s_lshl_b32 s50, s2, 3")
        self("s_add_u32 s50, s50, s17")
        self("s_lshl_b32 s50, s50, 8")
        self(f"s_add_u32 s50, s50, {0x1000000}")
        self("v_mov_b32 v1, 0")
        regs = [54, 56] + [58 + 2*i for i in range(1, self.nst+1)]
        for i, r in enumerate(regs):
            self(f"v_mov_b32 v3, s{r}")
            self(f"buffer_store_dword v3, v1, s[32:35], s50 offen offset:{4*i}")
            self("s_nop 1")
    def text(self): return "\n".join(self.lines) + "\n"

SLOT = 32768; XOFF = 16384; NSLOT = 5
HST = 14336
HPOSN = [32768 + n*HST for n in range(9)] + [0, HST] + [32768, 32768 + HST, 32768 + 2*HST]
def hbar(pos):
    a = HPOSN[pos]; b = a + HST - 1
    need = 0
    for sl in range(a // SLOT, b // SLOT + 1):
        last = max(st for st in range(16) if st % NSLOT == sl)
        need = max(need, last + 1)
    return need
FLAGBASE = 0xF000000
NAME = "standalone__spectral_fnet__prompt_kernel"

def srds(e):
    e("s_mov_b32 s28, s4"); e("s_mov_b32 s29, s5"); e("s_mov_b32 s30, 1835008"); e("s_mov_b32 s31, 0x00020000")
    e("s_mov_b32 s32, s42"); e("s_mov_b32 s33, s43"); e("s_mov_b32 s34, 0x10000000"); e("s_mov_b32 s35, 0x00020000")
    e("s_mov_b32 s20, s38"); e("s_mov_b32 s21, s39"); e("s_mov_b32 s22, 1835008"); e("s_mov_b32 s23, 0x00020000")
    e("s_mov_b32 s46, 401408"); e("s_mov_b32 s47, 0x00020000")
    e("s_mov_b32 s44, s10"); e("s_mov_b32 s45, s11")

def rot2(e, dst):
    if QROT2:
        e(f"s_mul_i32 s{dst}, s15, 7")
        e(f"s_add_u32 s{dst}, s{dst}, 1")
        e(f"s_lshr_b32 s{dst}, s{dst}, 1")
    else:
        e(f"s_mov_b32 s{dst}, 0")

def gen():
    e = Em()
    e.lines.append(f".globl {NAME}\n.p2align 8\n.type {NAME},@function\n{NAME}:")
    e("s_cmp_ge_u32 s2, 256")
    e("s_cbranch_scc1 L_done")
    e("s_load_dwordx8 s[4:11], s[0:1], 0")
    e("s_load_dwordx8 s[36:43], s[0:1], 32")
    if STAMP or DBGT: e("s_memrealtime s[54:55]")
    e.stamp()
    e("v_lshrrev_b32 v1, 6, v0")
    e("v_and_b32 v0, 63, v0")
    e("v_readfirstlane_b32 s17, v1")
    e("s_lshr_b32 s13, s2, 3")
    e("s_and_b32 s15, s13, 3")
    e("s_and_b32 s16, s2, 1")
    e("s_bfe_u32 s14, s2, 0x20001")
    e("s_lshl_b32 s14, s14, 3")
    e("s_lshr_b32 s12, s13, 2")
    e("s_add_u32 s14, s14, s12")
    e("s_lshl_b32 s90, s15, 2")
    e("s_lshr_b32 s12, s15, 1")
    e("s_lshl_b32 s12, s12, 1")
    e("s_sub_u32 s90, s90, s12")
    e("v_lshrrev_b32 v3, 4, v0")
    e("v_lshlrev_b32 v2, 4, v0")
    e("s_cmp_ge_u32 s17, 4")
    e("s_cbranch_scc1 L_loader")
    e("s_lshr_b32 s18, s17, 1")
    e("s_and_b32 s19, s17, 1")
    AD = 16
    e("v_and_b32 v11, 15, v0")
    e("v_lshrrev_b32 v12, 1, v11")
    e("v_xor_b32 v12, v12, v3")
    e("v_lshlrev_b32 v12, 4, v12")
    e("v_lshl_add_u32 v12, v11, 7, v12")
    e("s_lshl_b32 s48, s17, 12")
    e(f"v_add_u32 v{AD}, s48, v12")
    e(f"v_xor_b32 v{AD+1}, 64, v{AD}")
    e("v_bfe_u32 v11, v0, 2, 2")
    e("v_lshl_add_u32 v12, v3, 3, v11")
    e("v_lshlrev_b32 v12, 8, v12")
    e(f"v_add_u32 v12, {XOFF}, v12")
    e("v_and_b32 v13, 3, v0")
    e("v_lshrrev_b32 v14, 1, v13")
    e("v_xor_b32 v14, v14, v13")
    e("v_and_b32 v14, 1, v14")
    e("v_lshl_add_u32 v12, v14, 3, v12")
    e("v_and_b32 v14, 1, v3")
    e("v_lshlrev_b32 v14, 1, v14")
    e("v_xor_b32 v13, v13, v14")
    e("v_lshl_add_u32 v13, v11, 2, v13")
    for p in range(4):
        e(f"v_xor_b32 v14, {4*p}, v13")
        e(f"v_lshl_add_u32 v{AD+2+p}, v14, 4, v12")
        e(f"v_xor_b32 v{AD+6+p}, 8, v{AD+2+p}")
    for grp in (1, 2):
        for t in range(10):
            e(f"v_add_u32 v{AD+10*grp+t}, {2*SLOT*grp}, v{AD+t}")
    ACC = 48; FR = 112
    def acc(T, u): return ACC + (T*2+u)*4
    def xf(buf, T): return FR + buf*40 + T*4
    def cf(buf, u): return FR + buf*40 + 32 + u*4
    for r in range(64):
        e(f"v_mov_b32 v{ACC+r}, 0")
    e("v_mov_b32 v12, 0")
    e("v_mov_b32 v13, 1")
    e("v_mov_b32 v14, 0")
    e("v_mov_b32 v15, 0")
    e("s_waitcnt lgkmcnt(0)")
    srds(e)
    e("s_mov_b32 s48, s40"); e("s_mov_b32 s49, s41"); e("s_mov_b32 s50, 256"); e("s_mov_b32 s51, 0x00020000")
    e("s_lshl_b32 s52, s14, 7")
    e(f"s_add_u32 s52, s52, {FLAGBASE}")
    e("s_lshl_b32 s53, s16, 2")
    e("s_add_u32 s53, s53, s15")
    e("s_or_b32 s12, s53, s17")
    e("s_cmp_lg_u32 s12, 0")
    e("s_cbranch_scc1 L_noclear")
    e("s_mov_b64 exec, 1")
    e("buffer_store_dwordx2 v[14:15], v12, s[32:35], s52 offen sc1")
    e("s_waitcnt vmcnt(0)")
    e("buffer_store_byte v13, v12, s[48:51], s14 offen sc1")
    e("s_mov_b64 exec, -1")
    e.label("L_noclear")
    e("s_add_u32 s53, s53, s52")
    if TOUCHH:
        e("s_lshl_b32 s12, s13, 2")
        e("s_add_u32 s12, s12, s17")
        e("s_and_b32 s3, s12, 63")
        e("s_mul_i32 s3, s3, 6272")
        e("s_cmp_ge_u32 s12, 64")
        e("s_cselect_b32 s44, s36, s10")
        e("s_cselect_b32 s45, s37, s11")
        e("v_lshlrev_b32 v4, 7, v0")
        e("v_min_u32 v4, 6144, v4")
    e("s_lshl_b32 s24, s16, 1")
    e("s_add_u32 s24, s24, s18")
    e("s_lshl_b32 s24, s24, 7")
    e("s_lshl_b32 s12, s14, 2")
    e("s_add_u32 s24, s24, s12")
    e("s_lshl_b32 s12, s19, 1")
    e("s_add_u32 s24, s24, s12")
    e("s_mul_i32 s24, s24, 14")
    e("s_add_u32 s24, s24, s90")
    e("s_lshl_b32 s24, s24, 10")
    e("s_add_u32 s25, s24, 14336")
    e("s_cmp_eq_u32 s15, 2")
    e("s_cselect_b32 s26, 0x7f000000, s24")
    e("s_cselect_b32 s27, 0x7f000000, s25")
    e("s_cmp_eq_u32 s15, 1")
    e("s_cselect_b32 s92, 0x7f000000, s24")
    e("s_cselect_b32 s93, 0x7f000000, s25")
    e("s_cmp_eq_u32 s18, 1")
    e("s_cselect_b32 s12, 0x80008000, 0")
    e("s_mov_b32 vcc_lo, 0xffff0000")
    e("s_mov_b32 vcc_hi, 0x0000ffff")
    def reads(ks):
        st = ks // 2; kk = ks & 1
        slot = st % NSLOT; grp = slot // 2; base = (slot % 2) * SLOT
        buf = ks & 1
        out = []
        def xr(T):
            p = T // 2
            reg = AD + 10*grp + 2 + 4*(T & 1) + p
            for h in range(2):
                off = base + kk*8192 + h*1024
                d = xf(buf, T) + 2*h
                out.append((f"ds_read_b64_tr_b16 v[{d}:{d+1}], v{reg} offset:{off}", ("f", ks, "x", T)))
        def cr(u):
            d = cf(buf, u)
            out.append((f"ds_read_b128 v[{d}:{d+3}], v{AD+10*grp+kk} offset:{base + u*2048}", ("f", ks, "c", u)))
        xr(0); cr(0); cr(1)
        for T in range(1, 8): xr(T)
        return out
    e.stamp()
    e("s_barrier")
    e.stamp()
    for s_, tag in reads(0): e.lds(s_, tag)
    for ks in range(32):
        st = ks // 2; kk = ks & 1
        nxt = reads(ks+1) if ks < 31 else []
        ri = 0; mi = 0
        BARPOS = BARP if kk == 1 else -1
        for T in range(8):
            for u in range(2):
                Tw = min(7, (T // WGRP) * WGRP + WGRP - 1)
                e.wait_lg({("f", ks, "x", Tw), ("f", ks, "c", 1)})
                x = xf(ks & 1, T); c = cf(ks & 1, u); a = acc(T, u)
                e(f"v_mfma_f32_16x16x32_bf16 v[{a}:{a+3}], v[{x}:{x+3}], v[{c}:{c+3}], v[{a}:{a+3}]")
                if mi == BARPOS:
                    e.wait_lg_all()
                    e("s_barrier")
                    if st % 4 == 3: e.stamp()
                    if st == TCHST and TOUCHH:
                        e(f"buffer_load_dword v10, v4, s[44:47], s3 offen")
                    if st == CHKST:
                        e("s_cmp_lg_u32 s17, 0")
                        e("s_cbranch_scc1 L_nochk")
                        e("buffer_load_ubyte v9, v12, s[48:51], s14 offen sc1")
                        e.label("L_nochk")
                if mi >= BARPOS and ri < len(nxt):
                    rem_slots = 16 - mi
                    k_ = -(-(len(nxt) - ri) // max(rem_slots - 2, 1))
                    if FRONT: k_ = FRONT
                    for _ in range(min(k_, 3)):
                        if ri < len(nxt):
                            e.lds(*nxt[ri]); ri += 1
                mi += 1
        while ri < len(nxt):
            e.lds(*nxt[ri]); ri += 1
    e.stamp()
    e("s_nop 7")
    tmp = 192
    for uu in range(2):
        for p in range(4):
            t = tmp; tmp += 8
            a = acc(2*p, uu); b = acc(2*p+1, uu)
            e(f"v_cvt_pk_bf16_f32 v{t}, v{a}, v{a+1}")
            e(f"v_cvt_pk_bf16_f32 v{t+1}, v{a+2}, v{a+3}")
            e(f"v_cvt_pk_bf16_f32 v{t+2}, v{b}, v{b+1}")
            e(f"v_cvt_pk_bf16_f32 v{t+3}, v{b+2}, v{b+3}")
            for r in range(4): e(f"v_xor_b32 v{t+r}, s12, v{t+r}")
            e(f"v_cndmask_b32 v{t+4}, v{t}, v{t+2}, vcc")
            e(f"v_cndmask_b32 v{t+5}, v{t+1}, v{t+3}, vcc")
            e(f"v_cndmask_b32 v{t+6}, v{t+2}, v{t}, vcc")
            e(f"v_cndmask_b32 v{t+7}, v{t+3}, v{t+1}, vcc")
            so = {0: 26, 3: 92}.get(p, 24) + uu
            e(f"buffer_store_dwordx4 v[{t+4}:{t+7}], v2, s[32:35], s{so} offen offset:{p*1024} {PST}")
    e.stamp()
    A2 = 32; PF = 88; HF = 200
    def acc2(T, u): return A2 + (T*2+u)*4
    for r in range(56):
        e(f"v_mov_b32 v{A2+r}, 0")
    e("v_and_b32 v4, 15, v0")
    e("v_lshrrev_b32 v5, 1, v4")
    e("s_lshl_b32 s24, s19, 2")
    e("v_add_u32 v6, s24, v3")
    e("v_xor_b32 v5, v5, v6")
    e("v_lshlrev_b32 v5, 4, v5")
    e("v_lshl_add_u32 v16, v4, 7, v5")
    for g_ in (1, 2, 3):
        e(f"v_add_u32 v{16+g_}, {49152*g_}, v16")
    e("s_lshl_b32 s24, s14, 2")
    e("s_lshl_b32 s25, s16, 1")
    e("s_add_u32 s24, s24, s25")
    e("s_mul_i32 s24, s24, 14336")
    e("s_lshl_b32 s25, s19, 10")
    e("s_add_u32 s24, s24, s25")
    rot2(e, 26)
    e("s_add_u32 s26, s26, s18")
    for idx in range(7):
        e(f"s_add_u32 s25, s26, {2*idx}")
        e("s_sub_u32 s27, s25, 14")
        e("s_cmp_ge_u32 s25, 14")
        e("s_cselect_b32 s25, s27, s25")
        e("s_sub_u32 s27, s25, 7")
        e("s_cmp_ge_u32 s25, 7")
        e("s_cselect_b32 s25, s27, s25")
        e(f"s_cselect_b32 s27, {128*14336}, 0")
        e("s_lshl_b32 s25, s25, 11")
        e("s_add_u32 s25, s25, s27")
        e(f"s_add_u32 s{91+idx}, s25, s24")
    e.wait_vm_all()
    e.stamp()
    e("s_barrier")
    e("s_cmp_lg_u32 s17, 0")
    e("s_cbranch_scc1 L_nopoll")
    e("s_mov_b64 exec, 1")
    e("s_mov_b32 s3, 0")
    e.label("L_chk")
    e("v_readfirstlane_b32 s12, v9")
    e("s_cmp_eq_u32 s12, 1")
    e("s_cbranch_scc1 L_chkok")
    e("s_sleep 8")
    e("buffer_load_ubyte v9, v12, s[48:51], s14 offen sc1")
    e("s_add_u32 s3, s3, 1")
    e("s_cmp_gt_u32 s3, 0x40000")
    e("s_waitcnt vmcnt(0)")
    e("s_cbranch_scc0 L_chk")
    e.label("L_chkok")
    e("buffer_store_byte v13, v12, s[32:35], s53 offen sc1")
    e.label("L_poll")
    e("buffer_load_dwordx2 v[14:15], v12, s[32:35], s52 offen sc1")
    e("s_add_u32 s3, s3, 1")
    e("s_waitcnt vmcnt(0)")
    e("v_and_b32 v14, v14, v15")
    e("s_cmp_gt_u32 s3, 0x40000")
    e("v_readfirstlane_b32 s12, v14")
    e("s_cbranch_scc1 L_pollx")
    e("s_cmp_eq_u32 s12, 0x01010101")
    e("s_cbranch_scc1 L_pollx")
    if SLEEP: e(f"s_sleep {SLEEP}")
    e("s_branch L_poll")
    e.label("L_pollx")
    e("s_mov_b64 exec, -1")
    e.label("L_nopoll")
    e("s_barrier")
    e.stamp()
    e.vm = []; e.lg = []
    for idx in range(7):
        for kp in range(2):
            for u in range(2):
                off = (kp*256 + u)*14336
                r = PF + (idx*4 + kp*2 + u)*4
                e(f"s_add_u32 s25, s{91+idx}, {off}")
                e.vmem(f"buffer_load_dwordx4 v[{r}:{r+3}], v2, s[32:35], s25 offen {PLD}", ("p", idx))
    e.stamp()
    vm_save = list(e.vm)
    for wh in range(2):
        if wh == 0:
            e("s_cmp_lg_u32 s18, 0")
            e("s_cbranch_scc1 L_s2b")
        else:
            e.label("L_s2b")
        e.vm = list(vm_save); e.lg = []
        def hreads(idx):
            a = HPOSN[wh + 2*idx]
            grp = a // 49152; ob = a - 49152*grp
            out = []
            for T in range(7):
                d = HF + (idx & 1)*28 + T*4
                out.append((f"ds_read_b128 v[{d}:{d+3}], v{16+grp} offset:{ob + T*2048}", ("h", idx, T)))
            return out
        d19 = d20 = False
        for s_, tag in hreads(0): e.lds(s_, tag)
        for idx in range(7):
            npos = wh + 2*(idx+1) if idx < 6 else None
            if npos is not None and npos >= 3 and not d19:
                e.wait_lg_all()
                e("s_barrier"); d19 = True
            if npos is not None and npos >= 11 and not d20:
                e("s_barrier"); d20 = True
            e.wait_vm({("p", idx)})
            nxt = hreads(idx+1) if idx < 6 else []
            ri = 0
            for T in range(7):
                e.wait_lg({("h", idx, T)})
                h = HF + (idx & 1)*28 + T*4
                for kp in range(2):
                    for u in range(2):
                        p = PF + (idx*4 + kp*2 + u)*4; a = acc2(T, u)
                        e(f"v_mfma_f32_16x16x32_bf16 v[{a}:{a+3}], v[{h}:{h+3}], v[{p}:{p+3}], v[{a}:{a+3}]")
                        if ri < len(nxt) and kp == 1 and u == 0:
                            e.lds(*nxt[ri]); ri += 1
            while ri < len(nxt):
                e.lds(*nxt[ri]); ri += 1
        assert d19 and d20
        if wh == 0: e("s_branch L_s2_red")
    e.label("L_s2_red")
    e.vm = []; e.lg = []
    e.stamp()
    RS = 81920
    e("s_mul_i32 s48, s17, 14336")
    e(f"s_add_u32 s48, s48, {RS}")
    e("v_add_u32 v4, s48, v2")
    e(f"v_add_u32 v9, {RS}, v2")
    e("v_and_b32 v5, 15, v0")
    e("v_mul_u32_u24 v5, 896, v5")
    e("v_lshl_add_u32 v7, v3, 4, v5")
    e("v_lshl_add_u32 v8, v3, 3, v5")
    e("s_lshl_b32 s48, s14, 1")
    e("s_add_u32 s48, s48, s16")
    e("s_mul_i32 s48, s48, 28672")
    e("s_mul_i32 s49, s15, 224")
    e("s_add_u32 s48, s48, s49")
    e("s_add_u32 s49, s48, 14336")
    e("s_barrier")
    for T in range(7):
        for u in range(2):
            a = acc2(T, u)
            e(f"ds_write_b128 v4, v[{a}:{a+3}] offset:{(T*2+u)*1024}")
    e("s_waitcnt lgkmcnt(0)")
    e("s_barrier")
    items = {0: [(0,0),(0,1)], 1: [(0,2),(1,0)], 2: [(1,1),(1,2)], 3: [(0,3),(1,3)]}
    for w in range(4):
        e(f"s_cmp_lg_u32 s17, {w}")
        e(f"s_cbranch_scc1 L_fin{w}")
        for ii, (u, p) in enumerate(items[w]):
            tiles = [2*p, 2*p+1] if p < 3 else [6]
            base = 88 + ii*32
            for ti, T in enumerate(tiles):
                for ww in range(4):
                    r = base + (ti*4+ww)*4
                    e(f"ds_read_b128 v[{r}:{r+3}], v9 offset:{ww*14336 + (T*2+u)*1024}")
        e("s_waitcnt lgkmcnt(0)")
        for ii, (u, p) in enumerate(items[w]):
            tiles = [2*p, 2*p+1] if p < 3 else [6]
            base = 88 + ii*32
            o = 160 + ii*4
            for ti, T in enumerate(tiles):
                r = base + ti*16
                for q in range(4):
                    e(f"v_add_f32 v{r+q}, v{r+q}, v{r+4+q}")
                    e(f"v_add_f32 v{r+8+q}, v{r+8+q}, v{r+12+q}")
                for q in range(4):
                    e(f"v_add_f32 v{r+q}, v{r+q}, v{r+8+q}")
                e(f"v_cvt_pk_bf16_f32 v{o+2*ti}, v{r}, v{r+1}")
                e(f"v_cvt_pk_bf16_f32 v{o+2*ti+1}, v{r+2}, v{r+3}")
            if p < 3:
                e(f"buffer_store_dwordx4 v[{o}:{o+3}], v7, s[20:23], s{48+u} offen offset:{64*p}")
            else:
                e(f"buffer_store_dwordx2 v[{o}:{o+1}], v8, s[20:23], s{48+u} offen offset:192")
        e("s_branch L_end")
        e.label(f"L_fin{w}")
    e.label("L_loader")
    e.vm = []; e.lg = []
    nst_save = e.nst
    e.nst = 1
    e("s_sub_u32 s18, s17, 4")
    e("v_lshrrev_b32 v20, 3, v0")
    e("v_and_b32 v21, 7, v0")
    for q in range(8):
        e(f"v_add_u32 v22, {8*q}, v20")
        e(f"v_bfe_u32 v23, v22, 1, 3")
        e(f"v_xor_b32 v23, v23, v21")
        e(f"v_lshlrev_b32 v23, 4, v23")
        e(f"v_lshl_add_u32 v{4+q}, v22, 12, v23")
    e("s_lshl_b32 s48, s14, 18")
    e("s_lshl_b32 s49, s16, 11")
    e("s_add_u32 s48, s48, s49")
    e("s_lshl_b32 s49, s16, 10")
    e("s_lshl_b32 s50, s18, 5")
    e("s_add_u32 s49, s49, s50")
    e("s_mul_i32 s49, s49, 896")
    e("s_lshl_b32 s50, s90, 6")
    e("s_add_u32 s49, s49, s50")
    e("s_lshl_b32 s50, s18, 13")
    e(f"s_add_u32 s51, s50, {XOFF}")
    e("s_add_u32 s3, s14, s15")
    e("s_and_b32 s3, s3, 3")
    e("s_lshl_b32 s3, s3, 2")
    e("s_waitcnt lgkmcnt(0)")
    e("s_cmp_eq_u32 s18, 1")
    e("s_cselect_b32 s24, s8, s6")
    e("s_cselect_b32 s25, s9, s7")
    e("s_mov_b32 s26, 0x800000"); e("s_mov_b32 s27, 0x00020000")
    srds(e)
    ntc = " nt" if NTC else ""
    def stage_off(st):
        e(f"s_add_u32 s53, s3, {st}")
        e(f"s_and_b32 s53, s53, {3 if FIXOFF else 15}")
        e(f"s_lshl_b32 s52, s53, 7")
        e(f"s_add_u32 s52, s52, s48")
        e(f"s_mul_i32 s53, s53, {64*896}")
        e(f"s_add_u32 s53, s53, s49")
    def stage_c(st):
        slot = st % NSLOT
        if NOLOAD: return
        for q in range(8):
            e(f"s_add_u32 m0, s50, {slot*SLOT + q*1024}")
            e("s_nop 0")
            e.vmem(f"buffer_load_dwordx4 v{4+q}, s[24:27], s52 offen{ntc} lds", ("s", st))
    def stage_x(st):
        slot = st % NSLOT
        if NOLOAD: return
        for q in range(8):
            e(f"s_add_u32 m0, s51, {slot*SLOT + q*1024}")
            e("s_nop 0")
            e.vmem(f"buffer_load_dwordx4 v{12+q}, s[28:31], s53 offen lds", ("s", st))
    def stage(st):
        stage_off(st); stage_c(st); stage_x(st)
    stage_off(0); stage_c(0)
    e("v_and_b32 v22, 15, v0")
    e("v_lshlrev_b32 v23, 2, v3")
    e("v_xor_b32 v22, v22, v23")
    e("v_xor_b32 v24, 2, v22")
    e("v_mul_u32_u24 v23, 896, v3")
    e("v_lshl_add_u32 v22, v22, 4, v23")
    e("v_lshl_add_u32 v24, v24, 4, v23")
    for q in range(8):
        e(f"v_add_u32 v{12+q}, {4*q*896}, v{24 if (q>>1)&1 else 22}")
    stage_x(0)
    stage(1)
    e.stamp()
    e("s_lshl_b32 s12, s18, 3")
    e("v_add_u32 v27, s12, v20")
    for n in range(7):
        e(f"v_add_u32 v23, {16*n}, v27")
        e("v_bfe_u32 v24, v23, 1, 3")
        e("v_xor_b32 v24, v24, v21")
        if n < 6:
            e("v_bfe_u32 v25, v23, 2, 2")
            e("v_and_b32 v26, 3, v23")
            e("v_lshl_add_u32 v25, v25, 3, v26")
            e(f"v_add_u32 v23, {32*(n>>1) + 4*(n&1)}, v25")
        e("v_mul_u32_u24 v23, 896, v23")
        e(f"v_lshl_add_u32 v{32+n}, v24, 4, v23")
    e("s_mul_i32 s19, s15, 100352")
    e("s_lshl_b32 s12, s18, 10")
    rot2(e, 91)
    def hstage(pos):
        e(f"s_add_u32 s52, s91, {pos}")
        e("s_sub_u32 s53, s52, 14")
        e("s_cmp_ge_u32 s52, 14")
        e("s_cselect_b32 s52, s53, s52")
        e("s_sub_u32 s53, s52, 7")
        e("s_cmp_ge_u32 s52, 7")
        e("s_cselect_b32 s52, s53, s52")
        e("s_cselect_b32 s44, s36, s10")
        e("s_cselect_b32 s45, s37, s11")
        e("s_lshl_b32 s52, s52, 7")
        e("s_add_u32 s52, s52, s19")
        for n in range(7):
            e(f"s_add_u32 m0, s12, {HPOSN[pos] + n*2048}")
            e("s_nop 0")
            e.vmem(f"buffer_load_dwordx4 v{32+n}, s[44:47], s52 offen lds", ("h", pos))
    nxt = 2
    for b in range(17):
        if b < 16:
            e.wait_vm({("s", b)})
        e("s_barrier")
        tgt = b + 2 if b < RAMP else b + 4
        cnt = 0
        while nxt <= min(tgt, 15) and cnt < 2:
            stage(nxt); nxt += 1; cnt += 1
        for pos in range(11):
            if hbar(pos) == b: hstage(pos)
    assert nxt == 16
    e.stamp()
    e("s_barrier")
    e.wait_vm_all()
    e.stamp()
    e("s_barrier")
    e("s_barrier")
    hstage(11); hstage(12); hstage(13)
    e.wait_vm_all()
    e("s_barrier")
    e("s_barrier")
    e("s_barrier")
    e.label("L_end")
    if DBGT:
        e("s_waitcnt vmcnt(0)")
        e("s_cmp_lg_u32 s17, 0")
        e("s_cbranch_scc1 L_done")
        e("s_and_b32 s12, s2, 15")
        e("s_cmp_lg_u32 s12, 0")
        e("s_cbranch_scc1 L_done")
        e("s_memrealtime s[56:57]")
        e("s_mov_b32 s48, s40"); e("s_mov_b32 s49, s41"); e("s_mov_b32 s50, 256"); e("s_mov_b32 s51, 0x00020000")
        e("s_waitcnt lgkmcnt(0)")
        e("s_not_b32 s54, s54")
        e("v_mov_b32 v1, 0")
        e("v_mov_b32 v3, s54")
        e("v_mov_b32 v4, s56")
        e("s_mov_b64 exec, 1")
        e("buffer_atomic_umax v3, v1, s[48:51], 0 offen offset:32")
        e("buffer_atomic_umax v4, v1, s[48:51], 0 offen offset:36")
    if STAMP:
        e("s_waitcnt vmcnt(0)")
        e.nst = max(nst_save, e.nst)
        e.stamp()
        e.stamp_flush()
    e.label("L_done")
    e("s_endpgm")
    return e.text()

hdr = open("standalone__spectral_fnet__prompt.s.ref").read().split("; Override")[0]
out = hdr
out += f"; @launch grid=(256,1,1) block=(384,1,1) lds=163840\n"
out += '.amdgcn_target "amdgcn-amd-amdhsa--gfx950"\n.text\n'
out += gen()
out += f'''.section .rodata,"a"
.p2align 6
.amdhsa_kernel {NAME}
  .amdhsa_next_free_vgpr 256
  .amdhsa_next_free_sgpr 102
  .amdhsa_accum_offset 256
  .amdhsa_group_segment_fixed_size 0
  .amdhsa_kernarg_size 64
  .amdhsa_user_sgpr_count 2
  .amdhsa_user_sgpr_kernarg_segment_ptr 1
  .amdhsa_system_sgpr_workgroup_id_x 1
.end_amdhsa_kernel
'''
open(sys.argv[1], "w").write(out)
if '--info' in sys.argv:
    print([(p, HPOSN[p], hbar(p)) for p in range(14)])
```

```python
import sys
def opt(name, default):
    for a in sys.argv:
        if a.startswith(f"--{name}="): return type(default)(a.split("=")[1])
    return default
STAMP = '--stamp' in sys.argv
DBGT = '--dbgt' in sys.argv
FIXOFF = int('--fixoff' in sys.argv)
NTC = opt("ntc", 1)
TOUCHH = opt("touchh", 1)
SLEEP = opt("sleep", 8)
RAMP = opt("ramp", 4)
QROT2 = opt("qrot2", 1)
NOLOAD = opt("noload", 0)
PLD = opt("pld", "sc1")
PST = opt("pst", "sc1")
CHKST = opt("chkst", 9)
TCHST = opt("tchst", 8)
FRONT = opt("front", 0)
BARP = opt("barp", 3)
WGRP = opt("wgrp", 1)
NOBAR = opt("nobar", 0)
BADMAP = opt("badmap", 0)
PAD = opt("pad", 0)

class Em:
    def __init__(self):
        self.lines = []; self.vm = []; self.lg = []; self.nst = 0
    def __call__(self, s): self.lines.append("    " + s)
    def label(self, s): self.lines.append(s + ":")
    def vmem(self, s, tag): self(s); self.vm.append(tag)
    def lds(self, s, tag): self(s); self.lg.append(tag)
    def wait_vm(self, tags):
        idx = [i for i, t in enumerate(self.vm) if t in tags]
        if not idx: return
        n = min(len(self.vm) - 1 - max(idx), 63)
        self(f"s_waitcnt vmcnt({n})")
        self.vm = self.vm[len(self.vm) - n:] if n > 0 else []
    def wait_lg(self, tags):
        idx = [i for i, t in enumerate(self.lg) if t in tags]
        if not idx: return
        n = min(len(self.lg) - 1 - max(idx), 15)
        self(f"s_waitcnt lgkmcnt({n})")
        self.lg = self.lg[len(self.lg) - n:] if n > 0 else []
    def wait_lg_all(self): self("s_waitcnt lgkmcnt(0)"); self.lg = []
    def wait_vm_all(self): self("s_waitcnt vmcnt(0)"); self.vm = []
    def stamp(self):
        if not STAMP: return
        self.nst += 1
        r = 58 + 2*self.nst
        assert r < 90
        self(f"s_memtime s[{r}:{r+1}]")
    def stamp_flush(self):
        if not STAMP: return
        self("s_memrealtime s[56:57]")
        self("s_waitcnt lgkmcnt(0)")
        self("s_lshl_b32 s50, s2, 3")
        self("s_add_u32 s50, s50, s17")
        self("s_lshl_b32 s50, s50, 8")
        self(f"s_add_u32 s50, s50, {0x1000000}")
        self("v_mov_b32 v1, 0")
        regs = [54, 56] + [58 + 2*i for i in range(1, self.nst+1)]
        for i, r in enumerate(regs):
            self(f"v_mov_b32 v3, s{r}")
            self(f"buffer_store_dword v3, v1, s[32:35], s50 offen offset:{4*i}")
            self("s_nop 1")
    def text(self): return "\n".join(self.lines) + "\n"

SLOT = 32768; XOFF = 16384; NSLOT = 5
HST = 14336
HPOSN = [32768 + n*HST for n in range(9)] + [0, HST] + [32768, 32768 + HST, 32768 + 2*HST]
def hbar(pos):
    a = HPOSN[pos]; b = a + HST - 1
    need = 0
    for sl in range(a // SLOT, b // SLOT + 1):
        last = max(st for st in range(16) if st % NSLOT == sl)
        need = max(need, last + 1)
    return need
FLAGBASE = 0xF000000
NAME = "standalone__spectral_fnet__prompt_kernel"

def srds(e):
    e("s_mov_b32 s28, s4"); e("s_mov_b32 s29, s5"); e("s_mov_b32 s30, 1835008"); e("s_mov_b32 s31, 0x00020000")
    e("s_mov_b32 s32, s42"); e("s_mov_b32 s33, s43"); e("s_mov_b32 s34, 0x10000000"); e("s_mov_b32 s35, 0x00020000")
    e("s_mov_b32 s20, s38"); e("s_mov_b32 s21, s39"); e("s_mov_b32 s22, 1835008"); e("s_mov_b32 s23, 0x00020000")
    e("s_mov_b32 s46, 401408"); e("s_mov_b32 s47, 0x00020000")
    e("s_mov_b32 s44, s10"); e("s_mov_b32 s45, s11")

def rot2(e, dst):
    if QROT2:
        e(f"s_mul_i32 s{dst}, s15, 7")
        e(f"s_add_u32 s{dst}, s{dst}, 1")
        e(f"s_lshr_b32 s{dst}, s{dst}, 1")
    else:
        e(f"s_mov_b32 s{dst}, 0")

def gen():
    e = Em()
    e.lines.append(f".globl {NAME}\n.p2align 8\n.type {NAME},@function\n{NAME}:")
    e("s_cmp_ge_u32 s2, 256")
    e("s_cbranch_scc1 L_done")
    for _ in range(PAD):
        e("s_mov_b32 s3, 0x12345678")
    if BADMAP:
        e("s_lshr_b32 s3, s2, 5")
        e("s_and_b32 s2, s2, 31")
        e("s_lshl_b32 s2, s2, 3")
        e("s_or_b32 s2, s2, s3")
    e("s_load_dwordx8 s[4:11], s[0:1], 0")
    e("s_load_dwordx8 s[36:43], s[0:1], 32")
    if STAMP or DBGT: e("s_memrealtime s[54:55]")
    e.stamp()
    e("v_lshrrev_b32 v1, 6, v0")
    e("v_and_b32 v0, 63, v0")
    e("v_readfirstlane_b32 s17, v1")
    e("s_lshr_b32 s13, s2, 3")
    e("s_and_b32 s15, s13, 3")
    e("s_and_b32 s16, s2, 1")
    e("s_bfe_u32 s14, s2, 0x20001")
    e("s_lshl_b32 s14, s14, 3")
    e("s_lshr_b32 s12, s13, 2")
    e("s_add_u32 s14, s14, s12")
    e("s_lshl_b32 s90, s15, 2")
    e("s_lshr_b32 s12, s15, 1")
    e("s_lshl_b32 s12, s12, 1")
    e("s_sub_u32 s90, s90, s12")
    e("v_lshrrev_b32 v3, 4, v0")
    e("v_lshlrev_b32 v2, 4, v0")
    e("s_cmp_ge_u32 s17, 4")
    e("s_cbranch_scc1 L_loader")
    e("s_lshr_b32 s18, s17, 1")
    e("s_and_b32 s19, s17, 1")
    AD = 16
    e("v_and_b32 v11, 15, v0")
    e("v_lshrrev_b32 v12, 1, v11")
    e("v_xor_b32 v12, v12, v3")
    e("v_lshlrev_b32 v12, 4, v12")
    e("v_lshl_add_u32 v12, v11, 7, v12")
    e("s_lshl_b32 s48, s17, 12")
    e(f"v_add_u32 v{AD}, s48, v12")
    e(f"v_xor_b32 v{AD+1}, 64, v{AD}")
    e("v_bfe_u32 v11, v0, 2, 2")
    e("v_lshl_add_u32 v12, v3, 3, v11")
    e("v_lshlrev_b32 v12, 8, v12")
    e(f"v_add_u32 v12, {XOFF}, v12")
    e("v_and_b32 v13, 3, v0")
    e("v_lshrrev_b32 v14, 1, v13")
    e("v_xor_b32 v14, v14, v13")
    e("v_and_b32 v14, 1, v14")
    e("v_lshl_add_u32 v12, v14, 3, v12")
    e("v_and_b32 v14, 1, v3")
    e("v_lshlrev_b32 v14, 1, v14")
    e("v_xor_b32 v13, v13, v14")
    e("v_lshl_add_u32 v13, v11, 2, v13")
    for p in range(4):
        e(f"v_xor_b32 v14, {4*p}, v13")
        e(f"v_lshl_add_u32 v{AD+2+p}, v14, 4, v12")
        e(f"v_xor_b32 v{AD+6+p}, 8, v{AD+2+p}")
    for grp in (1, 2):
        for t in range(10):
            e(f"v_add_u32 v{AD+10*grp+t}, {2*SLOT*grp}, v{AD+t}")
    ACC = 48; FR = 112
    def acc(T, u): return ACC + (T*2+u)*4
    def xf(buf, T): return FR + buf*40 + T*4
    def cf(buf, u): return FR + buf*40 + 32 + u*4
    for r in range(64):
        e(f"v_mov_b32 v{ACC+r}, 0")
    e("v_mov_b32 v12, 0")
    e("v_mov_b32 v13, 1")
    e("v_mov_b32 v14, 0")
    e("v_mov_b32 v15, 0")
    e("s_waitcnt lgkmcnt(0)")
    srds(e)
    e("s_mov_b32 s48, s40"); e("s_mov_b32 s49, s41"); e("s_mov_b32 s50, 256"); e("s_mov_b32 s51, 0x00020000")
    e("s_lshl_b32 s52, s14, 7")
    e(f"s_add_u32 s52, s52, {FLAGBASE}")
    e("s_lshl_b32 s53, s16, 2")
    e("s_add_u32 s53, s53, s15")
    e("s_or_b32 s12, s53, s17")
    e("s_cmp_lg_u32 s12, 0")
    e("s_cbranch_scc1 L_noclear")
    e("s_mov_b64 exec, 1")
    e("buffer_store_dwordx2 v[14:15], v12, s[32:35], s52 offen sc1")
    e("s_waitcnt vmcnt(0)")
    e("buffer_store_byte v13, v12, s[48:51], s14 offen sc1")
    e("s_mov_b64 exec, -1")
    e.label("L_noclear")
    e("s_add_u32 s53, s53, s52")
    if TOUCHH:
        e("s_lshl_b32 s12, s13, 2")
        e("s_add_u32 s12, s12, s17")
        e("s_and_b32 s3, s12, 63")
        e("s_mul_i32 s3, s3, 6272")
        e("s_cmp_ge_u32 s12, 64")
        e("s_cselect_b32 s44, s36, s10")
        e("s_cselect_b32 s45, s37, s11")
        e("v_lshlrev_b32 v4, 7, v0")
        e("v_min_u32 v4, 6144, v4")
    e("s_lshl_b32 s24, s16, 1")
    e("s_add_u32 s24, s24, s18")
    e("s_lshl_b32 s24, s24, 7")
    e("s_lshl_b32 s12, s14, 2")
    e("s_add_u32 s24, s24, s12")
    e("s_lshl_b32 s12, s19, 1")
    e("s_add_u32 s24, s24, s12")
    e("s_mul_i32 s24, s24, 14")
    e("s_add_u32 s24, s24, s90")
    e("s_lshl_b32 s24, s24, 10")
    e("s_add_u32 s25, s24, 14336")
    e("s_cmp_eq_u32 s15, 2")
    e("s_cselect_b32 s26, 0x7f000000, s24")
    e("s_cselect_b32 s27, 0x7f000000, s25")
    e("s_cmp_eq_u32 s15, 1")
    e("s_cselect_b32 s92, 0x7f000000, s24")
    e("s_cselect_b32 s93, 0x7f000000, s25")
    e("s_cmp_eq_u32 s18, 1")
    e("s_cselect_b32 s12, 0x80008000, 0")
    e("s_mov_b32 vcc_lo, 0xffff0000")
    e("s_mov_b32 vcc_hi, 0x0000ffff")
    def reads(ks):
        st = ks // 2; kk = ks & 1
        slot = st % NSLOT; grp = slot // 2; base = (slot % 2) * SLOT
        buf = ks & 1
        out = []
        def xr(T):
            p = T // 2
            reg = AD + 10*grp + 2 + 4*(T & 1) + p
            for h in range(2):
                off = base + kk*8192 + h*1024
                d = xf(buf, T) + 2*h
                out.append((f"ds_read_b64_tr_b16 v[{d}:{d+1}], v{reg} offset:{off}", ("f", ks, "x", T)))
        def cr(u):
            d = cf(buf, u)
            out.append((f"ds_read_b128 v[{d}:{d+3}], v{AD+10*grp+kk} offset:{base + u*2048}", ("f", ks, "c", u)))
        xr(0); cr(0); cr(1)
        for T in range(1, 8): xr(T)
        return out
    e.stamp()
    e("s_barrier")
    e.stamp()
    for s_, tag in reads(0): e.lds(s_, tag)
    for ks in range(32):
        st = ks // 2; kk = ks & 1
        nxt = reads(ks+1) if ks < 31 else []
        ri = 0; mi = 0
        BARPOS = BARP if kk == 1 else -1
        for T in range(8):
            for u in range(2):
                Tw = min(7, (T // WGRP) * WGRP + WGRP - 1)
                e.wait_lg({("f", ks, "x", Tw), ("f", ks, "c", 1)})
                x = xf(ks & 1, T); c = cf(ks & 1, u); a = acc(T, u)
                e(f"v_mfma_f32_16x16x32_bf16 v[{a}:{a+3}], v[{x}:{x+3}], v[{c}:{c+3}], v[{a}:{a+3}]")
                if mi == BARPOS:
                    e.wait_lg_all()
                    e("s_barrier")
                    if st % 4 == 3: e.stamp()
                    if st == TCHST and TOUCHH:
                        e(f"buffer_load_dword v10, v4, s[44:47], s3 offen")
                    if st == CHKST:
                        e("s_cmp_lg_u32 s17, 0")
                        e("s_cbranch_scc1 L_nochk")
                        e("buffer_load_ubyte v9, v12, s[48:51], s14 offen sc1")
                        e.label("L_nochk")
                if mi >= BARPOS and ri < len(nxt):
                    rem_slots = 16 - mi
                    k_ = -(-(len(nxt) - ri) // max(rem_slots - 2, 1))
                    if FRONT: k_ = FRONT
                    for _ in range(min(k_, 3)):
                        if ri < len(nxt):
                            e.lds(*nxt[ri]); ri += 1
                mi += 1
        while ri < len(nxt):
            e.lds(*nxt[ri]); ri += 1
    e.stamp()
    e("s_nop 7")
    tmp = 192
    for uu in range(2):
        for p in range(4):
            t = tmp; tmp += 8
            a = acc(2*p, uu); b = acc(2*p+1, uu)
            e(f"v_cvt_pk_bf16_f32 v{t}, v{a}, v{a+1}")
            e(f"v_cvt_pk_bf16_f32 v{t+1}, v{a+2}, v{a+3}")
            e(f"v_cvt_pk_bf16_f32 v{t+2}, v{b}, v{b+1}")
            e(f"v_cvt_pk_bf16_f32 v{t+3}, v{b+2}, v{b+3}")
            for r in range(4): e(f"v_xor_b32 v{t+r}, s12, v{t+r}")
            e(f"v_cndmask_b32 v{t+4}, v{t}, v{t+2}, vcc")
            e(f"v_cndmask_b32 v{t+5}, v{t+1}, v{t+3}, vcc")
            e(f"v_cndmask_b32 v{t+6}, v{t+2}, v{t}, vcc")
            e(f"v_cndmask_b32 v{t+7}, v{t+3}, v{t+1}, vcc")
            so = {0: 26, 3: 92}.get(p, 24) + uu
            e(f"buffer_store_dwordx4 v[{t+4}:{t+7}], v2, s[32:35], s{so} offen offset:{p*1024} {PST}")
    e.stamp()
    A2 = 32; PF = 88; HF = 200
    def acc2(T, u): return A2 + (T*2+u)*4
    for r in range(56):
        e(f"v_mov_b32 v{A2+r}, 0")
    e("v_and_b32 v4, 15, v0")
    e("v_lshrrev_b32 v5, 1, v4")
    e("s_lshl_b32 s24, s19, 2")
    e("v_add_u32 v6, s24, v3")
    e("v_xor_b32 v5, v5, v6")
    e("v_lshlrev_b32 v5, 4, v5")
    e("v_lshl_add_u32 v16, v4, 7, v5")
    for g_ in (1, 2, 3):
        e(f"v_add_u32 v{16+g_}, {49152*g_}, v16")
    e("s_lshl_b32 s24, s14, 2")
    e("s_lshl_b32 s25, s16, 1")
    e("s_add_u32 s24, s24, s25")
    e("s_mul_i32 s24, s24, 14336")
    e("s_lshl_b32 s25, s19, 10")
    e("s_add_u32 s24, s24, s25")
    rot2(e, 26)
    e("s_add_u32 s26, s26, s18")
    for idx in range(7):
        e(f"s_add_u32 s25, s26, {2*idx}")
        e("s_sub_u32 s27, s25, 14")
        e("s_cmp_ge_u32 s25, 14")
        e("s_cselect_b32 s25, s27, s25")
        e("s_sub_u32 s27, s25, 7")
        e("s_cmp_ge_u32 s25, 7")
        e("s_cselect_b32 s25, s27, s25")
        e(f"s_cselect_b32 s27, {128*14336}, 0")
        e("s_lshl_b32 s25, s25, 11")
        e("s_add_u32 s25, s25, s27")
        e(f"s_add_u32 s{91+idx}, s25, s24")
    e.wait_vm_all()
    e.stamp()
    e("s_barrier")
    e("s_cmp_lg_u32 s17, 0")
    e("s_cbranch_scc1 L_nopoll")
    e("s_mov_b64 exec, 1")
    e("s_mov_b32 s3, 0")
    e.label("L_chk")
    e("v_readfirstlane_b32 s12, v9")
    e("s_cmp_eq_u32 s12, 1")
    e("s_cbranch_scc1 L_chkok")
    e("s_sleep 8")
    e("buffer_load_ubyte v9, v12, s[48:51], s14 offen sc1")
    e("s_add_u32 s3, s3, 1")
    e("s_cmp_gt_u32 s3, 0x40000")
    e("s_waitcnt vmcnt(0)")
    e("s_cbranch_scc0 L_chk")
    e.label("L_chkok")
    e("buffer_store_byte v13, v12, s[32:35], s53 offen sc1")
    e.label("L_poll")
    e("buffer_load_dwordx2 v[14:15], v12, s[32:35], s52 offen sc1")
    e("s_add_u32 s3, s3, 1")
    e("s_waitcnt vmcnt(0)")
    e("v_and_b32 v14, v14, v15")
    e("s_cmp_gt_u32 s3, 0x40000")
    e("v_readfirstlane_b32 s12, v14")
    e("s_cbranch_scc1 L_pollx")
    e("s_cmp_eq_u32 s12, 0x01010101")
    e("s_cbranch_scc1 L_pollx")
    if SLEEP: e(f"s_sleep {SLEEP}")
    e("s_branch L_poll")
    e.label("L_pollx")
    e("s_mov_b64 exec, -1")
    e.label("L_nopoll")
    e("s_barrier")
    e.stamp()
    e.vm = []; e.lg = []
    for idx in range(7):
        for kp in range(2):
            for u in range(2):
                off = (kp*256 + u)*14336
                r = PF + (idx*4 + kp*2 + u)*4
                e(f"s_add_u32 s25, s{91+idx}, {off}")
                e.vmem(f"buffer_load_dwordx4 v[{r}:{r+3}], v2, s[32:35], s25 offen {PLD}", ("p", idx))
    e.stamp()
    vm_save = list(e.vm)
    for wh in range(2):
        if wh == 0:
            e("s_cmp_lg_u32 s18, 0")
            e("s_cbranch_scc1 L_s2b")
        else:
            e.label("L_s2b")
        e.vm = list(vm_save); e.lg = []
        def hreads(idx):
            a = HPOSN[wh + 2*idx]
            grp = a // 49152; ob = a - 49152*grp
            out = []
            for T in range(7):
                d = HF + (idx & 1)*28 + T*4
                out.append((f"ds_read_b128 v[{d}:{d+3}], v{16+grp} offset:{ob + T*2048}", ("h", idx, T)))
            return out
        d19 = d20 = False
        for s_, tag in hreads(0): e.lds(s_, tag)
        for idx in range(7):
            npos = wh + 2*(idx+1) if idx < 6 else None
            if npos is not None and npos >= 3 and not d19:
                e.wait_lg_all()
                e("s_barrier"); d19 = True
            if npos is not None and npos >= 11 and not d20:
                e("s_barrier"); d20 = True
            e.wait_vm({("p", idx)})
            nxt = hreads(idx+1) if idx < 6 else []
            ri = 0
            for T in range(7):
                e.wait_lg({("h", idx, T)})
                h = HF + (idx & 1)*28 + T*4
                for kp in range(2):
                    for u in range(2):
                        p = PF + (idx*4 + kp*2 + u)*4; a = acc2(T, u)
                        e(f"v_mfma_f32_16x16x32_bf16 v[{a}:{a+3}], v[{h}:{h+3}], v[{p}:{p+3}], v[{a}:{a+3}]")
                        if ri < len(nxt) and kp == 1 and u == 0:
                            e.lds(*nxt[ri]); ri += 1
            while ri < len(nxt):
                e.lds(*nxt[ri]); ri += 1
        assert d19 and d20
        if wh == 0: e("s_branch L_s2_red")
    e.label("L_s2_red")
    e.vm = []; e.lg = []
    e.stamp()
    RS = 81920
    e("s_mul_i32 s48, s17, 14336")
    e(f"s_add_u32 s48, s48, {RS}")
    e("v_add_u32 v4, s48, v2")
    e(f"v_add_u32 v9, {RS}, v2")
    e("v_and_b32 v5, 15, v0")
    e("v_mul_u32_u24 v5, 896, v5")
    e("v_lshl_add_u32 v7, v3, 4, v5")
    e("v_lshl_add_u32 v8, v3, 3, v5")
    e("s_lshl_b32 s48, s14, 1")
    e("s_add_u32 s48, s48, s16")
    e("s_mul_i32 s48, s48, 28672")
    e("s_mul_i32 s49, s15, 224")
    e("s_add_u32 s48, s48, s49")
    e("s_add_u32 s49, s48, 14336")
    e("s_barrier")
    for T in range(7):
        for u in range(2):
            a = acc2(T, u)
            e(f"ds_write_b128 v4, v[{a}:{a+3}] offset:{(T*2+u)*1024}")
    e("s_waitcnt lgkmcnt(0)")
    e("s_barrier")
    items = {0: [(0,0),(0,1)], 1: [(0,2),(1,0)], 2: [(1,1),(1,2)], 3: [(0,3),(1,3)]}
    for w in range(4):
        e(f"s_cmp_lg_u32 s17, {w}")
        e(f"s_cbranch_scc1 L_fin{w}")
        for ii, (u, p) in enumerate(items[w]):
            tiles = [2*p, 2*p+1] if p < 3 else [6]
            base = 88 + ii*32
            for ti, T in enumerate(tiles):
                for ww in range(4):
                    r = base + (ti*4+ww)*4
                    e(f"ds_read_b128 v[{r}:{r+3}], v9 offset:{ww*14336 + (T*2+u)*1024}")
        e("s_waitcnt lgkmcnt(0)")
        for ii, (u, p) in enumerate(items[w]):
            tiles = [2*p, 2*p+1] if p < 3 else [6]
            base = 88 + ii*32
            o = 160 + ii*4
            for ti, T in enumerate(tiles):
                r = base + ti*16
                for q in range(4):
                    e(f"v_add_f32 v{r+q}, v{r+q}, v{r+4+q}")
                    e(f"v_add_f32 v{r+8+q}, v{r+8+q}, v{r+12+q}")
                for q in range(4):
                    e(f"v_add_f32 v{r+q}, v{r+q}, v{r+8+q}")
                e(f"v_cvt_pk_bf16_f32 v{o+2*ti}, v{r}, v{r+1}")
                e(f"v_cvt_pk_bf16_f32 v{o+2*ti+1}, v{r+2}, v{r+3}")
            if p < 3:
                e(f"buffer_store_dwordx4 v[{o}:{o+3}], v7, s[20:23], s{48+u} offen offset:{64*p}")
            else:
                e(f"buffer_store_dwordx2 v[{o}:{o+1}], v8, s[20:23], s{48+u} offen offset:192")
        e("s_branch L_end")
        e.label(f"L_fin{w}")
    e.label("L_loader")
    e.vm = []; e.lg = []
    nst_save = e.nst
    e.nst = 1
    e("s_sub_u32 s18, s17, 4")
    e("v_lshrrev_b32 v20, 3, v0")
    e("v_and_b32 v21, 7, v0")
    for q in range(8):
        e(f"v_add_u32 v22, {8*q}, v20")
        e(f"v_bfe_u32 v23, v22, 1, 3")
        e(f"v_xor_b32 v23, v23, v21")
        e(f"v_lshlrev_b32 v23, 4, v23")
        e(f"v_lshl_add_u32 v{4+q}, v22, 12, v23")
    e("s_lshl_b32 s48, s14, 18")
    e("s_lshl_b32 s49, s16, 11")
    e("s_add_u32 s48, s48, s49")
    e("s_lshl_b32 s49, s16, 10")
    e("s_lshl_b32 s50, s18, 5")
    e("s_add_u32 s49, s49, s50")
    e("s_mul_i32 s49, s49, 896")
    e("s_lshl_b32 s50, s90, 6")
    e("s_add_u32 s49, s49, s50")
    e("s_lshl_b32 s50, s18, 13")
    e(f"s_add_u32 s51, s50, {XOFF}")
    e("s_add_u32 s3, s14, s15")
    e("s_and_b32 s3, s3, 3")
    e("s_lshl_b32 s3, s3, 2")
    e("s_waitcnt lgkmcnt(0)")
    e("s_cmp_eq_u32 s18, 1")
    e("s_cselect_b32 s24, s8, s6")
    e("s_cselect_b32 s25, s9, s7")
    e("s_mov_b32 s26, 0x800000"); e("s_mov_b32 s27, 0x00020000")
    srds(e)
    ntc = " nt" if NTC else ""
    def stage_off(st):
        e(f"s_add_u32 s53, s3, {st}")
        e(f"s_and_b32 s53, s53, {3 if FIXOFF else 15}")
        e(f"s_lshl_b32 s52, s53, 7")
        e(f"s_add_u32 s52, s52, s48")
        e(f"s_mul_i32 s53, s53, {64*896}")
        e(f"s_add_u32 s53, s53, s49")
    def stage_c(st):
        slot = st % NSLOT
        if NOLOAD: return
        for q in range(8):
            e(f"s_add_u32 m0, s50, {slot*SLOT + q*1024}")
            e("s_nop 0")
            e.vmem(f"buffer_load_dwordx4 v{4+q}, s[24:27], s52 offen{ntc} lds", ("s", st))
    def stage_x(st):
        slot = st % NSLOT
        if NOLOAD: return
        for q in range(8):
            e(f"s_add_u32 m0, s51, {slot*SLOT + q*1024}")
            e("s_nop 0")
            e.vmem(f"buffer_load_dwordx4 v{12+q}, s[28:31], s53 offen lds", ("s", st))
    def stage(st):
        stage_off(st); stage_c(st); stage_x(st)
    stage_off(0); stage_c(0)
    e("v_and_b32 v22, 15, v0")
    e("v_lshlrev_b32 v23, 2, v3")
    e("v_xor_b32 v22, v22, v23")
    e("v_xor_b32 v24, 2, v22")
    e("v_mul_u32_u24 v23, 896, v3")
    e("v_lshl_add_u32 v22, v22, 4, v23")
    e("v_lshl_add_u32 v24, v24, 4, v23")
    for q in range(8):
        e(f"v_add_u32 v{12+q}, {4*q*896}, v{24 if (q>>1)&1 else 22}")
    stage_x(0)
    stage(1)
    e.stamp()
    e("s_lshl_b32 s12, s18, 3")
    e("v_add_u32 v27, s12, v20")
    for n in range(7):
        e(f"v_add_u32 v23, {16*n}, v27")
        e("v_bfe_u32 v24, v23, 1, 3")
        e("v_xor_b32 v24, v24, v21")
        if n < 6:
            e("v_bfe_u32 v25, v23, 2, 2")
            e("v_and_b32 v26, 3, v23")
            e("v_lshl_add_u32 v25, v25, 3, v26")
            e(f"v_add_u32 v23, {32*(n>>1) + 4*(n&1)}, v25")
        e("v_mul_u32_u24 v23, 896, v23")
        e(f"v_lshl_add_u32 v{32+n}, v24, 4, v23")
    e("s_mul_i32 s19, s15, 100352")
    e("s_lshl_b32 s12, s18, 10")
    rot2(e, 91)
    def hstage(pos):
        e(f"s_add_u32 s52, s91, {pos}")
        e("s_sub_u32 s53, s52, 14")
        e("s_cmp_ge_u32 s52, 14")
        e("s_cselect_b32 s52, s53, s52")
        e("s_sub_u32 s53, s52, 7")
        e("s_cmp_ge_u32 s52, 7")
        e("s_cselect_b32 s52, s53, s52")
        e("s_cselect_b32 s44, s36, s10")
        e("s_cselect_b32 s45, s37, s11")
        e("s_lshl_b32 s52, s52, 7")
        e("s_add_u32 s52, s52, s19")
        for n in range(7):
            e(f"s_add_u32 m0, s12, {HPOSN[pos] + n*2048}")
            e("s_nop 0")
            e.vmem(f"buffer_load_dwordx4 v{32+n}, s[44:47], s52 offen lds", ("h", pos))
    nxt = 2
    for b in range(17):
        if b < 16:
            e.wait_vm({("s", b)})
        e("s_barrier")
        tgt = b + 2 if b < RAMP else b + 4
        cnt = 0
        while nxt <= min(tgt, 15) and cnt < 2:
            stage(nxt); nxt += 1; cnt += 1
        for pos in range(11):
            if hbar(pos) == b: hstage(pos)
    assert nxt == 16
    e.stamp()
    e("s_barrier")
    e.wait_vm_all()
    e.stamp()
    e("s_barrier")
    e("s_barrier")
    hstage(11); hstage(12); hstage(13)
    e.wait_vm_all()
    e("s_barrier")
    e("s_barrier")
    e("s_barrier")
    e.label("L_end")
    if DBGT:
        e("s_waitcnt vmcnt(0)")
        e("s_cmp_lg_u32 s17, 0")
        e("s_cbranch_scc1 L_done")
        e("s_and_b32 s12, s2, 15")
        e("s_cmp_lg_u32 s12, 0")
        e("s_cbranch_scc1 L_done")
        e("s_memrealtime s[56:57]")
        e("s_mov_b32 s48, s40"); e("s_mov_b32 s49, s41"); e("s_mov_b32 s50, 256"); e("s_mov_b32 s51, 0x00020000")
        e("s_waitcnt lgkmcnt(0)")
        e("s_not_b32 s54, s54")
        e("v_mov_b32 v1, 0")
        e("v_mov_b32 v3, s54")
        e("v_mov_b32 v4, s56")
        e("s_mov_b64 exec, 1")
        e("buffer_atomic_umax v3, v1, s[48:51], 0 offen offset:32")
        e("buffer_atomic_umax v4, v1, s[48:51], 0 offen offset:36")
    if STAMP:
        e("s_waitcnt vmcnt(0)")
        e.nst = max(nst_save, e.nst)
        e.stamp()
        e.stamp_flush()
    e.label("L_done")
    e("s_endpgm")
    return e.text()

hdr = open("standalone__spectral_fnet__prompt.s.ref").read().split("; Override")[0]
out = hdr
out += f"; @launch grid=(256,1,1) block=(384,1,1) lds=163840\n"
out += '.amdgcn_target "amdgcn-amd-amdhsa--gfx950"\n.text\n'
out += gen()
out += f'''.section .rodata,"a"
.p2align 6
.amdhsa_kernel {NAME}
  .amdhsa_next_free_vgpr 256
  .amdhsa_next_free_sgpr 102
  .amdhsa_accum_offset 256
  .amdhsa_group_segment_fixed_size 0
  .amdhsa_kernarg_size 64
  .amdhsa_user_sgpr_count 2
  .amdhsa_user_sgpr_kernarg_segment_ptr 1
  .amdhsa_system_sgpr_workgroup_id_x 1
.end_amdhsa_kernel
'''
open(sys.argv[1], "w").write(out)
if '--info' in sys.argv:
    print([(p, HPOSN[p], hbar(p)) for p in range(14)])
```

```python
import sys
def opt(name, default):
    for a in sys.argv:
        if a.startswith(f"--{name}="): return type(default)(a.split("=")[1])
    return default
STAMP = '--stamp' in sys.argv
MEMT = 's_memrealtime' if '--rt' in sys.argv else 's_memtime'
SLEEP = opt("sleep", 4)
NPRE = opt("npre", 2)
LOOK = opt("look", 4)
HPB = opt("hpb", 3)
CHKST = opt("chkst", 12)

class Em:
    def __init__(self):
        self.lines = []; self.vm = []; self.lg = []; self.nst = 0
    def __call__(self, s): self.lines.append("    " + s)
    def label(self, s): self.lines.append(s + ":")
    def vmem(self, s, tag): self(s); self.vm.append(tag)
    def lds(self, s, tag): self(s); self.lg.append(tag)
    def wait_vm(self, tags):
        idx = [i for i, t in enumerate(self.vm) if t in tags]
        if not idx: return
        n = min(len(self.vm) - 1 - max(idx), 63)
        self(f"s_waitcnt vmcnt({n})")
        self.vm = self.vm[len(self.vm) - n:] if n > 0 else []
    def wait_lg(self, tags):
        idx = [i for i, t in enumerate(self.lg) if t in tags]
        if not idx: return
        n = min(len(self.lg) - 1 - max(idx), 15)
        self(f"s_waitcnt lgkmcnt({n})")
        self.lg = self.lg[len(self.lg) - n:] if n > 0 else []
    def wait_lg_all(self): self("s_waitcnt lgkmcnt(0)"); self.lg = []
    def wait_vm_all(self): self("s_waitcnt vmcnt(0)"); self.vm = []
    def stamp(self):
        if not STAMP: return
        self.nst += 1
        r = 58 + 2*self.nst
        assert r < 84
        self(f"{MEMT} s[{r}:{r+1}]")
    def stamp_flush(self):
        if not STAMP: return
        self("s_memrealtime s[56:57]")
        self("s_waitcnt lgkmcnt(0)")
        self("s_lshl_b32 s50, s2, 3")
        self("s_add_u32 s50, s50, s17")
        self("s_lshl_b32 s50, s50, 8")
        self(f"s_add_u32 s50, s50, {0x1000000}")
        self("v_mov_b32 v1, 0")
        regs = [54, 56] + [58 + 2*i for i in range(1, self.nst+1)]
        for i, r in enumerate(regs):
            self(f"v_mov_b32 v3, s{r}")
            self(f"buffer_store_dword v3, v1, s[32:35], s50 offen offset:{4*i}")
            self("s_nop 1")
    def text(self): return "\n".join(self.lines) + "\n"

SLOT = 32768; XOFF = 16384; NSLOT = 5
HST = 14336
HPOSN = [32768 + n*HST for n in range(9)] + [0, HST] + [32768, 32768 + HST, 32768 + 2*HST]
def hbar(pos):
    a = HPOSN[pos]; b = a + HST - 1
    need = 0
    for sl in range(a // SLOT, b // SLOT + 1):
        last = max(st for st in range(16) if st % NSLOT == sl)
        need = max(need, last + 1)
    return need
NAME = "standalone__spectral_fnet__prompt_kernel"

def rot2(e, dst):
    e(f"s_mul_i32 s{dst}, s15, 7")
    e(f"s_add_u32 s{dst}, s{dst}, 1")
    e(f"s_lshr_b32 s{dst}, s{dst}, 1")
    e(f"s_and_b32 s98, s14, 7")
    e(f"s_mul_i32 s98, s98, 7")
    e(f"s_lshr_b32 s98, s98, 2")
    e(f"s_add_u32 s{dst}, s{dst}, s98")
    e(f"s_sub_u32 s98, s{dst}, 14")
    e(f"s_cmp_ge_u32 s{dst}, 14")
    e(f"s_cselect_b32 s{dst}, s98, s{dst}")

def gen():
    e = Em()
    e.lines.append(f".globl {NAME}\n.p2align 8\n.type {NAME},@function\n{NAME}:")
    e("s_cmp_ge_u32 s2, 256")
    e("s_cbranch_scc1 L_done")
    e("s_load_dwordx8 s[4:11], s[0:1], 0")
    e("s_load_dwordx8 s[36:43], s[0:1], 32")
    if STAMP: e("s_memrealtime s[54:55]")
    e.stamp()
    e("v_lshrrev_b32 v1, 6, v0")
    e("v_and_b32 v0, 63, v0")
    e("v_readfirstlane_b32 s17, v1")
    e("s_lshr_b32 s13, s2, 3")
    e("s_and_b32 s15, s13, 3")
    e("s_and_b32 s16, s2, 1")
    e("s_bfe_u32 s14, s2, 0x20001")
    e("s_lshl_b32 s14, s14, 3")
    e("s_lshr_b32 s12, s13, 2")
    e("s_add_u32 s14, s14, s12")
    e("s_lshl_b32 s90, s15, 2")
    e("s_and_b32 s12, s15, 2")
    e("s_sub_u32 s90, s90, s12")
    e("v_lshrrev_b32 v3, 4, v0")
    e("v_lshlrev_b32 v2, 4, v0")
    e("s_mov_b32 s34, 0x10000000"); e("s_mov_b32 s35, 0x00020000")
    e("s_cmp_lt_u32 s17, 4")
    e("s_cbranch_scc1 L_compute")
    e("s_sub_u32 s18, s17, 4")
    e("v_lshrrev_b32 v20, 3, v0")
    e("v_and_b32 v21, 7, v0")
    e("v_lshrrev_b32 v22, 1, v20")
    e("v_xor_b32 v23, v22, v21")
    e("v_xor_b32 v24, 4, v23")
    e("v_lshlrev_b32 v25, 12, v20")
    e("v_lshl_add_u32 v23, v23, 4, v25")
    e("v_lshl_add_u32 v24, v24, 4, v25")
    for q in range(8):
        e(f"v_add_u32 v{4+q}, {8*q*4096 - 1024*(q&3)}, v{24 if q & 1 else 23}")
    e("v_and_b32 v22, 15, v0")
    e("v_lshlrev_b32 v23, 2, v3")
    e("v_xor_b32 v22, v22, v23")
    e("v_xor_b32 v24, 2, v22")
    e("v_mul_u32_u24 v23, 896, v3")
    e("v_lshl_add_u32 v22, v22, 4, v23")
    e("v_lshl_add_u32 v24, v24, 4, v23")
    for q in range(8):
        e(f"v_add_u32 v{12+q}, {4*q*896 - 1024*(q&3)}, v{24 if (q>>1)&1 else 22}")
    e("s_lshl_b32 s52, s14, 18")
    e("s_lshl_b32 s49, s16, 11")
    e("s_add_u32 s52, s52, s49")
    e("s_lshl_b32 s53, s16, 10")
    e("s_lshl_b32 s50, s18, 5")
    e("s_add_u32 s53, s53, s50")
    e("s_mul_i32 s53, s53, 896")
    e("s_lshl_b32 s50, s90, 6")
    e("s_add_u32 s53, s53, s50")
    e("s_lshl_b32 s50, s18, 13")
    e(f"s_add_u32 s51, s50, {SLOT*NSLOT}")
    e("s_mov_b32 s26, 0x800000"); e("s_mov_b32 s27, 0x00020000")
    e("s_mov_b32 s30, 1835008"); e("s_mov_b32 s31, 0x00020000")
    e("s_mov_b32 s46, 401408"); e("s_mov_b32 s47, 0x00020000")
    e("s_mov_b32 s3, 0")
    e("s_cmp_eq_u32 s18, 1")
    e("s_waitcnt lgkmcnt(0)")
    e("s_cselect_b32 s24, s8, s6")
    e("s_cselect_b32 s25, s9, s7")
    e("s_mov_b32 s28, s4"); e("s_mov_b32 s29, s5")
    e("s_mov_b32 s32, s42"); e("s_mov_b32 s33, s43")
    e("s_mov_b32 s44, s10"); e("s_mov_b32 s45, s11")
    e("s_getpc_b64 s[86:87]")
    e("s_add_u32 s86, s86, L_after0 - . + 4 - 4")
    e.lines.pop(); e.lines.pop()
    e("s_call_b64 s[86:87], L_issue")
    e("s_branch L_lcont")
    e.label("L_issue")
    for part in range(2):
        for q in range(8):
            if (q & 3) == 0:
                e(f"s_add_u32 m0, s50, {part*XOFF + q*1024}")
                e("s_nop 0")
            off = f" offset:{1024*(q&3)}"
            if part == 0:
                e(f"buffer_load_dwordx4 v{4+q}, s[24:27], s52 offen{off} lds")
            else:
                e(f"buffer_load_dwordx4 v{12+q}, s[28:31], s53 offen{off} lds")
    e("s_add_u32 s52, s52, 128")
    e(f"s_add_u32 s53, s53, {64*896}")
    e(f"s_add_u32 s50, s50, {SLOT}")
    e(f"s_sub_u32 s49, s50, {SLOT*NSLOT}")
    e("s_cmp_ge_u32 s50, s51")
    e("s_cselect_b32 s50, s49, s50")
    e("s_setpc_b64 s[86:87]")
    e.label("L_lcont")
    e("s_call_b64 s[86:87], L_issue")
    e.stamp()
    e("s_lshl_b32 s12, s18, 3")
    e("v_add_u32 v27, s12, v20")
    for n in range(7):
        e(f"v_add_u32 v23, {16*n}, v27")
        e("v_bfe_u32 v24, v23, 1, 3")
        e("v_xor_b32 v24, v24, v21")
        if n < 6:
            e("v_bfe_u32 v25, v23, 2, 2")
            e("v_and_b32 v26, 3, v23")
            e("v_lshl_add_u32 v25, v25, 3, v26")
            e(f"v_add_u32 v23, {32*(n>>1) + 4*(n&1)}, v25")
        e("v_mul_u32_u24 v23, 896, v23")
        e(f"v_lshl_add_u32 v{32+n}, v24, 4, v23")
    e("s_mul_i32 s19, s15, 100352")
    e("s_lshl_b32 s12, s18, 10")
    rot2(e, 91)
    if LOOK == 4:
        e("s_waitcnt vmcnt(16)")
        e("s_barrier")
        e("s_call_b64 s[86:87], L_issue")
        e("s_call_b64 s[86:87], L_issue")
        e("s_waitcnt vmcnt(32)")
        e("s_barrier")
        e("s_call_b64 s[86:87], L_issue")
        e("s_call_b64 s[86:87], L_issue")
        e("s_mov_b32 s3, 2")
    elif LOOK == 3:
        e("s_waitcnt vmcnt(16)")
        e("s_barrier")
        e("s_call_b64 s[86:87], L_issue")
        e("s_call_b64 s[86:87], L_issue")
        e("s_mov_b32 s3, 1")
    e.label("L_lloop")
    e(f"s_waitcnt vmcnt({16*(LOOK-1)})")
    e("s_barrier")
    e("s_call_b64 s[86:87], L_issue")
    e("s_add_u32 s3, s3, 1")
    e(f"s_cmp_lt_u32 s3, {16-LOOK}")
    e("s_cbranch_scc1 L_lloop")
    e.vm = [("s", st) for st in range(16-LOOK, 16) for _ in range(16)]
    def hstage(pos):
        e(f"s_add_u32 s92, s12, {HPOSN[pos]}")
        e("s_call_b64 s[86:87], L_hissue")
        e.vm += [("h", pos)]*7
    hn = 0
    for b in range(16-LOOK, 17):
        if b < 16: e.wait_vm({("s", b)})
        e("s_barrier")
        cnt = 0
        while hn < 11 and hbar(hn) <= b and (cnt < HPB or b == 16):
            hstage(hn); hn += 1; cnt += 1
    e.stamp()
    e("s_barrier")
    e.wait_vm_all()
    e.stamp()
    e("s_barrier")
    e("s_barrier")
    hstage(11); hstage(12); hstage(13)
    e.wait_vm_all()
    e("s_barrier")
    e("s_barrier")
    e("s_barrier")
    e("s_branch L_end")
    e.label("L_hissue")
    e("s_sub_u32 s53, s91, 7")
    e("s_cmp_ge_u32 s91, 7")
    e("s_cselect_b32 s52, s53, s91")
    e("s_cselect_b32 s44, s36, s10")
    e("s_cselect_b32 s45, s37, s11")
    e("s_lshl_b32 s52, s52, 7")
    e("s_add_u32 s52, s52, s19")
    for n in range(7):
        e(f"s_add_u32 m0, s92, {n*2048}")
        e("s_nop 0")
        e(f"buffer_load_dwordx4 v{32+n}, s[44:47], s52 offen lds")
    e("s_add_u32 s91, s91, 1")
    e("s_cmp_ge_u32 s91, 14")
    e("s_cselect_b32 s91, 0, s91")
    e("s_setpc_b64 s[86:87]")
    nst_l = e.nst
    e.label("L_compute")
    e.vm = []; e.lg = []
    e.nst = 1
    e("s_lshr_b32 s18, s17, 1")
    e("s_and_b32 s19, s17, 1")
    e("s_lshl_b32 s24, s16, 1")
    e("s_add_u32 s24, s24, s18")
    e("s_lshl_b32 s24, s24, 7")
    e("s_lshl_b32 s12, s14, 2")
    e("s_add_u32 s24, s24, s12")
    e("s_mul_i32 s24, s24, 14")
    e("s_add_u32 s24, s24, s90")
    e("s_lshl_b32 s12, s19, 1")
    e("s_add_u32 s24, s24, s12")
    e("s_lshl_b32 s24, s24, 10")
    e("s_add_u32 s25, s24, 1024")
    e("s_lshl_b32 s12, s15, 1")
    e("s_add_u32 s12, s12, s19")
    e("s_cmp_eq_u32 s12, 4")
    e("s_cselect_b32 s24, 0x7f000000, s24")
    e("s_cmp_eq_u32 s12, 3")
    e("s_cselect_b32 s25, 0x7f000000, s25")
    for u in range(4):
        e(f"v_add_u32 v{40+u}, {u*14336}, v2")
    e("v_mov_b64 v[14:15], 0")
    e("v_mov_b32 v12, 0")
    e("v_mov_b32 v13, 1")
    e("s_mov_b32 s50, 256"); e("s_mov_b32 s51, 0x00020000")
    e("s_mov_b32 s22, 1835008"); e("s_mov_b32 s23, 0x00020000")
    e("s_lshl_b32 s52, s14, 7")
    e(f"s_add_u32 s52, s52, {0xF000000}")
    e("s_lshl_b32 s53, s16, 2")
    e("s_add_u32 s53, s53, s15")
    e("s_waitcnt lgkmcnt(0)")
    e("s_mov_b32 s32, s42"); e("s_mov_b32 s33, s43")
    e("s_mov_b32 s20, s38"); e("s_mov_b32 s21, s39")
    e("s_mov_b32 s48, s40"); e("s_mov_b32 s49, s41")
    e("s_or_b32 s12, s53, s17")
    e("s_cmp_lg_u32 s12, 0")
    e("s_cbranch_scc1 L_noclear")
    e("s_mov_b64 exec, 1")
    e("buffer_store_dwordx2 v[14:15], v12, s[32:35], s52 offen sc1")
    e("s_waitcnt vmcnt(0)")
    e("s_lshl_b32 s12, s14, 2")
    e("buffer_store_dword v13, v12, s[48:51], s12 offen sc1")
    e("s_mov_b64 exec, -1")
    e.label("L_noclear")
    e("s_add_u32 s53, s53, s52")
    AB = 16
    AC = 22
    e("v_and_b32 v5, 15, v0")
    e("v_lshrrev_b32 v12, 1, v5")
    e("v_xor_b32 v12, v12, v3")
    e("v_lshlrev_b32 v12, 4, v12")
    e("v_lshl_add_u32 v12, v5, 7, v12")
    e("s_lshl_b32 s12, s18, 13")
    e(f"v_add_u32 v{AB}, s12, v12")
    e(f"v_xor_b32 v{AB+1}, 64, v{AB}")
    e("v_bfe_u32 v5, v0, 2, 2")
    e("v_lshl_add_u32 v12, v3, 3, v5")
    e("v_lshlrev_b32 v12, 8, v12")
    e(f"v_add_u32 v12, {XOFF}, v12")
    e("v_and_b32 v13, 3, v0")
    e("v_lshrrev_b32 v14, 1, v13")
    e("v_xor_b32 v14, v14, v13")
    e("v_and_b32 v14, 1, v14")
    e("v_lshl_add_u32 v12, v14, 3, v12")
    e("v_and_b32 v14, 1, v3")
    e("v_lshlrev_b32 v14, 1, v14")
    e("v_xor_b32 v13, v13, v14")
    e("v_lshl_add_u32 v13, v5, 2, v13")
    e("s_lshl_b32 s12, s19, 3")
    e("v_xor_b32 v13, s12, v13")
    for pp in range(2):
        e(f"v_xor_b32 v14, {4*pp}, v13")
        e(f"v_lshl_add_u32 v{AB+2+pp}, v14, 4, v12")
        e(f"v_xor_b32 v{AB+4+pp}, 8, v{AB+2+pp}")
    for t in range(6):
        e(f"v_mov_b32 v{AC+t}, v{AB+t}")
    ACC = 48; FR = 112
    def acc(T, u): return ACC + (T*4+u)*4
    def xf(buf, T): return FR + buf*32 + T*4
    def cf(buf, u): return FR + buf*32 + 16 + u*4
    for r in range(0, 64, 2):
        e(f"v_mov_b64 v[{ACC+r}:{ACC+r+1}], 0")
    e("v_mov_b32 v12, 0")
    e("v_mov_b32 v13, 1")
    e("s_mov_b32 vcc_lo, 0xffff0000")
    e("s_mov_b32 vcc_hi, 0x0000ffff")
    e("s_cmp_eq_u32 s18, 1")
    e("s_cselect_b32 s12, 0x80008000, 0")
    def reads(kk):
        buf = kk
        out = []
        def xr(T):
            reg = AC + 2 + 2*(T & 1) + (T >> 1)
            for h in range(2):
                off = kk*8192 + h*1024
                d = xf(buf, T) + 2*h
                out.append((f"ds_read_b64_tr_b16 v[{d}:{d+1}], v{reg} offset:{off}", ("f", kk, "x", T)))
        def cr(u):
            d = cf(buf, u)
            out.append((f"ds_read_b128 v[{d}:{d+3}], v{AC+kk} offset:{u*2048}", ("f", kk, "c", u)))
        xr(0)
        for u in range(4): cr(u)
        for T in range(1, 4): xr(T)
        return out
    e("s_mov_b32 s28, 0")
    e("s_mov_b32 s29, 0")
    e.stamp()
    e("s_barrier")
    e.stamp()
    for s_, tag in reads(0): e.lds(s_, tag)
    e.label("L_main")
    for kk in range(2):
        nxt = reads(1 - kk)
        ri = 0; mi = 0
        BARPOS = 3 if kk == 1 else 0
        for T in range(4):
            for u in range(4):
                e.wait_lg({("f", kk, "x", T), ("f", kk, "c", u)})
                x = xf(kk, T); c = cf(kk, u); a = acc(T, u)
                e(f"v_mfma_f32_16x16x32_bf16 v[{a}:{a+3}], v[{x}:{x+3}], v[{c}:{c+3}], v[{a}:{a+3}]")
                if kk == 1 and mi < 3:
                    if mi == 0:
                        e(f"s_add_u32 s29, s29, {SLOT}")
                        e(f"s_cmp_ge_u32 s29, {SLOT*NSLOT}")
                        e("s_cselect_b32 s29, 0, s29")
                    for t in range(2*mi, 2*mi+2):
                        e(f"v_add_u32 v{AC+t}, s29, v{AB+t}")
                if kk == 1 and mi == BARPOS:
                    e.wait_lg_all()
                    e("s_barrier")
                if mi >= BARPOS and ri < len(nxt):
                    n_ = 2 if (kk == 1 and mi < BARPOS + 2) else 1
                    for _ in range(n_):
                        if ri < len(nxt):
                            e.lds(*nxt[ri]); ri += 1
                mi += 1
        assert ri == len(nxt)
    e("s_add_u32 s28, s28, 1")
    e("s_cmp_lt_u32 s28, 16")
    e("s_cbranch_scc1 L_main")
    e.stamp()
    e("s_lshl_b32 s3, s14, 2")
    e("s_load_dword s30, s[40:41], s3")
    e("s_nop 2")
    tmp = 192
    for u in range(4):
        for pp in range(2):
            t = tmp; tmp += 8
            a = acc(2*pp, u); b = acc(2*pp+1, u)
            e(f"v_cvt_pk_bf16_f32 v{t}, v{a}, v{a+1}")
            e(f"v_cvt_pk_bf16_f32 v{t+1}, v{a+2}, v{a+3}")
            e(f"v_cvt_pk_bf16_f32 v{t+2}, v{b}, v{b+1}")
            e(f"v_cvt_pk_bf16_f32 v{t+3}, v{b+2}, v{b+3}")
            for r in range(4): e(f"v_xor_b32 v{t+r}, s12, v{t+r}")
            e(f"v_cndmask_b32 v{t+4}, v{t}, v{t+2}, vcc")
            e(f"v_cndmask_b32 v{t+5}, v{t+1}, v{t+3}, vcc")
            e(f"v_cndmask_b32 v{t+6}, v{t+2}, v{t}, vcc")
            e(f"v_cndmask_b32 v{t+7}, v{t+3}, v{t+1}, vcc")
            e(f"buffer_store_dwordx4 v[{t+4}:{t+7}], v{40+u}, s[32:35], s{24+pp} offen sc1")
    e.stamp()
    A2 = 32; PF = 88; HF = 200
    def acc2(T, u): return A2 + (T*2+u)*4
    e("s_waitcnt lgkmcnt(0)")
    e.lg = []
    e("v_and_b32 v4, 15, v0")
    e("v_lshrrev_b32 v5, 1, v4")
    e("s_lshl_b32 s24, s19, 2")
    e("v_add_u32 v6, s24, v3")
    e("v_xor_b32 v5, v5, v6")
    e("v_lshlrev_b32 v5, 4, v5")
    e("v_lshl_add_u32 v5, v4, 7, v5")
    e("s_lshl_b32 s24, s14, 2")
    e("s_lshl_b32 s25, s16, 1")
    e("s_add_u32 s24, s24, s25")
    e("s_mul_i32 s24, s24, 14336")
    e("s_lshl_b32 s25, s19, 10")
    e("s_add_u32 s24, s24, s25")
    rot2(e, 26)
    e("s_add_u32 s26, s26, s18")
    for idx in range(7):
        e(f"s_add_u32 s25, s26, {2*idx}")
        e("s_sub_u32 s27, s25, 14")
        e("s_cmp_ge_u32 s25, 14")
        e("s_cselect_b32 s25, s27, s25")
        e("s_sub_u32 s27, s25, 7")
        e("s_cmp_ge_u32 s25, 7")
        e("s_cselect_b32 s25, s27, s25")
        e(f"s_cselect_b32 s27, {128*14336}, 0")
        e("s_lshl_b32 s25, s25, 11")
        e("s_add_u32 s25, s25, s27")
        e(f"s_add_u32 s{91+idx}, s25, s24")
    e("v_mov_b32 v24, v2")
    e("v_add_u32 v25, 14336, v2")
    e(f"v_add_u32 v26, {256*14336}, v2")
    e(f"v_add_u32 v27, {257*14336}, v2")
    e.vm = [("st",)]*8
    def pload(idx, track=True):
        for kp in range(2):
            for u in range(2):
                r = PF + (idx*4 + kp*2 + u)*4
                s_ = f"buffer_load_dwordx4 v[{r}:{r+3}], v{24+kp*2+u}, s[32:35], s{91+idx} offen sc1"
                if track: e.vmem(s_, ("p", idx))
                else: e(s_)
    e("s_cmp_eq_u32 s18, 1")
    for idx in range(7):
        e(f"s_mov_b32 s24, {HPOSN[2*idx]}")
        e(f"s_cselect_b32 s24, {HPOSN[1+2*idx]}, s24")
        e(f"v_add_u32 v{16+idx}, s24, v5")
    for r in range(0, 56, 2):
        e(f"v_mov_b64 v[{A2+r}:{A2+r+1}], 0")
    e.wait_vm_all()
    e.stamp()
    e("s_barrier")
    e("s_cmp_lg_u32 s17, 0")
    e("s_cbranch_scc1 L_nopoll")
    e("s_mov_b64 exec, 1")
    e("s_cmp_eq_u32 s30, 1")
    e("s_cbranch_scc0 L_clrslow")
    e.label("L_clrok")
    e("buffer_store_byte v13, v12, s[32:35], s53 offen sc1")
    e.label("L_poll")
    e("buffer_load_dwordx2 v[14:15], v12, s[32:35], s52 offen sc1")
    e("s_waitcnt vmcnt(0)")
    e("v_and_b32 v14, v14, v15")
    e("s_nop 0")
    e("v_readfirstlane_b32 s12, v14")
    e("s_cmp_eq_u32 s12, 0x01010101")
    e("s_cbranch_scc1 L_pollx")
    if SLEEP: e(f"s_sleep {SLEEP}")
    e("s_branch L_poll")
    e.label("L_pollx")
    e("s_mov_b64 exec, -1")
    e.label("L_nopoll")
    e("s_barrier")
    e.stamp()
    for idx in range(NPRE): pload(idx)
    def hreads(idx):
        out = []
        for T in range(7):
            d = HF + (idx & 1)*28 + T*4
            out.append((f"ds_read_b128 v[{d}:{d+3}], v{16+idx} offset:{T*2048}", ("h", idx, T)))
        return out
    for s_, tag in hreads(0): e.lds(s_, tag)
    slow = []
    for idx in range(7):
        if idx == 1:
            e.wait_lg_all()
            e("s_barrier")
        if idx == 4:
            e("s_barrier")
        e.wait_vm({("p", idx)})
        if idx == 0: e.stamp()
        if idx + NPRE < 7: pload(idx + NPRE)
        nxt = hreads(idx+1) if idx < 6 else []
        ri = 0
        for T in range(7):
            e.wait_lg({("h", idx, T)})
            h = HF + (idx & 1)*28 + T*4
            for kp in range(2):
                for u in range(2):
                    p = PF + (idx*4 + kp*2 + u)*4; a = acc2(T, u)
                    e(f"v_mfma_f32_16x16x32_bf16 v[{a}:{a+3}], v[{h}:{h+3}], v[{p}:{p+3}], v[{a}:{a+3}]")
                    if ri < len(nxt) and kp == 1 and u == 0:
                        e.lds(*nxt[ri]); ri += 1
        while ri < len(nxt):
            e.lds(*nxt[ri]); ri += 1
    e.vm = []; e.lg = []
    e.stamp()
    RS = 81920
    e("s_mul_i32 s48, s17, 14336")
    e(f"s_add_u32 s48, s48, {RS}")
    e("v_add_u32 v4, s48, v2")
    e("v_and_b32 v5, 15, v0")
    e("v_mul_u32_u24 v5, 896, v5")
    e("v_lshl_add_u32 v7, v3, 4, v5")
    e("v_lshl_add_u32 v8, v3, 3, v5")
    e("s_lshl_b32 s48, s14, 1")
    e("s_add_u32 s48, s48, s16")
    e("s_mul_i32 s48, s48, 28672")
    e("s_mul_i32 s49, s15, 224")
    e("s_add_u32 s48, s48, s49")
    for ii in range(2):
        e("s_lshl_b32 s24, s17, 1")
        if ii: e("s_add_u32 s24, s24, 1")
        e("s_sub_u32 s25, s24, 3")
        e("s_cmp_ge_u32 s24, 3")
        e("s_cselect_b32 s24, s25, s24")
        e("s_cselect_b32 s25, 1, 0")
        e("s_lshl_b32 s26, s24, 12")
        e("s_lshl_b32 s27, s25, 10")
        e("s_add_u32 s26, s26, s27")
        e(f"s_add_u32 s26, s26, {RS}")
        e(f"v_add_u32 v{10+ii}, s26, v2")
        e("s_mul_i32 s25, s25, 14336")
        e("s_lshl_b32 s24, s24, 6")
        e("s_add_u32 s24, s24, s25")
        e(f"s_add_u32 s{91+ii}, s24, s48")
    e("s_barrier")
    for T in range(7):
        for u in range(2):
            a = acc2(T, u)
            e(f"ds_write_b128 v4, v[{a}:{a+3}] offset:{(T*2+u)*1024}")
    e("s_waitcnt lgkmcnt(0)")
    e("s_barrier")
    e("s_cmp_eq_u32 s17, 3")
    e("s_cbranch_scc1 L_fin3")
    def red(r, o):
        for q in range(4):
            e(f"v_add_f32 v{r+q}, v{r+q}, v{r+4+q}")
            e(f"v_add_f32 v{r+8+q}, v{r+8+q}, v{r+12+q}")
        for q in range(4):
            e(f"v_add_f32 v{r+q}, v{r+q}, v{r+8+q}")
        e(f"v_cvt_pk_bf16_f32 v{o}, v{r}, v{r+1}")
        e(f"v_cvt_pk_bf16_f32 v{o+1}, v{r+2}, v{r+3}")
    for ii in range(2):
        for ti in range(2):
            for ww in range(4):
                r = 88 + ii*32 + (ti*4+ww)*4
                e(f"ds_read_b128 v[{r}:{r+3}], v{10+ii} offset:{ww*14336 + ti*2048}")
    for ii in range(2):
        e(f"s_waitcnt lgkmcnt({8 if ii == 0 else 0})")
        for ti in range(2):
            red(88 + ii*32 + ti*16, 160 + ii*4 + 2*ti)
        e(f"buffer_store_dwordx4 v[{160+ii*4}:{163+ii*4}], v7, s[20:23], s{91+ii} offen")
    e("s_branch L_end")
    e.label("L_fin3")
    e(f"v_add_u32 v10, {RS + 12*1024}, v2")
    e("s_add_u32 s49, s48, 14336")
    for u in range(2):
        for ww in range(4):
            r = 88 + u*16 + ww*4
            e(f"ds_read_b128 v[{r}:{r+3}], v10 offset:{ww*14336 + u*1024}")
    e("s_waitcnt lgkmcnt(0)")
    for u in range(2):
        red(88 + u*16, 160 + 2*u)
        e(f"buffer_store_dwordx2 v[{160+2*u}:{161+2*u}], v8, s[20:23], s{48+u} offen offset:192")
    e.label("L_end")
    if STAMP:
        e("s_waitcnt vmcnt(0)")
        e.nst = max(nst_l, e.nst)
        e.stamp()
        e.stamp_flush()
    e.label("L_done")
    e("s_endpgm")
    e.label("L_clrslow")
    e("s_sleep 8")
    e("buffer_load_dword v14, v12, s[48:51], s3 offen sc1")
    e("s_waitcnt vmcnt(0)")
    e("v_readfirstlane_b32 s30, v14")
    e("s_cmp_eq_u32 s30, 1")
    e("s_cbranch_scc1 L_clrok")
    e("s_branch L_clrslow")
    return e.text()

hdr = open("standalone__spectral_fnet__prompt.s.ref").read().split("; Override")[0]
out = hdr
out += f"; @launch grid=(256,1,1) block=(384,1,1) lds=163840\n"
out += '.amdgcn_target "amdgcn-amd-amdhsa--gfx950"\n.text\n'
out += gen()
out += f'''.section .rodata,"a"
.p2align 6
.amdhsa_kernel {NAME}
  .amdhsa_next_free_vgpr 256
  .amdhsa_next_free_sgpr 102
  .amdhsa_accum_offset 256
  .amdhsa_group_segment_fixed_size 0
  .amdhsa_kernarg_size 64
  .amdhsa_user_sgpr_count 2
  .amdhsa_user_sgpr_kernarg_segment_ptr 1
  .amdhsa_system_sgpr_workgroup_id_x 1
.end_amdhsa_kernel
'''
open(sys.argv[1], "w").write(out)
```

```python
import sys
def opt(name, default):
    for a in sys.argv:
        if a.startswith(f"--{name}="): return type(default)(a.split("=")[1])
    return default
STAMP = '--stamp' in sys.argv
MEMT = 's_memrealtime' if '--rt' in sys.argv else 's_memtime'
SLEEP = opt("sleep", 4)
NPRE = opt("npre", 2)
LOOK = opt("look", 4)
HPB = opt("hpb", 3)
CHKST = opt("chkst", 12)
PERST = opt("perst", 0)
HLATE = opt("hlate", 0)
LPRIO = opt("lprio", 0)
CPRIO = opt("cprio", 0)
OUTF = opt("outf", "")
SKIPH = opt("skiph", 1)
PSUM = opt("psum", 0)
CPF = opt("cpf", 0)
NOB20 = opt("nob20", 0)

class Em:
    def __init__(self):
        self.lines = []; self.vm = []; self.lg = []; self.nst = 0
    def __call__(self, s): self.lines.append("    " + s)
    def label(self, s): self.lines.append(s + ":")
    def vmem(self, s, tag): self(s); self.vm.append(tag)
    def lds(self, s, tag): self(s); self.lg.append(tag)
    def wait_vm(self, tags):
        idx = [i for i, t in enumerate(self.vm) if t in tags]
        if not idx: return
        n = min(len(self.vm) - 1 - max(idx), 63)
        self(f"s_waitcnt vmcnt({n})")
        self.vm = self.vm[len(self.vm) - n:] if n > 0 else []
    def wait_lg(self, tags):
        idx = [i for i, t in enumerate(self.lg) if t in tags]
        if not idx: return
        n = min(len(self.lg) - 1 - max(idx), 15)
        self(f"s_waitcnt lgkmcnt({n})")
        self.lg = self.lg[len(self.lg) - n:] if n > 0 else []
    def wait_lg_all(self): self("s_waitcnt lgkmcnt(0)"); self.lg = []
    def wait_vm_all(self): self("s_waitcnt vmcnt(0)"); self.vm = []
    def stamp(self):
        if not STAMP: return
        self.nst += 1
        r = 58 + 2*self.nst
        assert r < 84
        self(f"{MEMT} s[{r}:{r+1}]")
    def stamp_flush(self):
        if not STAMP: return
        self("s_memrealtime s[56:57]")
        self("s_waitcnt lgkmcnt(0)")
        self("s_lshl_b32 s50, s2, 3")
        self("s_add_u32 s50, s50, s17")
        self("s_lshl_b32 s50, s50, 8")
        self(f"s_add_u32 s50, s50, {0x1000000}")
        self("v_mov_b32 v1, 0")
        regs = [54, 56] + [58 + 2*i for i in range(1, self.nst+1)]
        for i, r in enumerate(regs):
            self(f"v_mov_b32 v3, s{r}")
            self(f"buffer_store_dword v3, v1, s[32:35], s50 offen offset:{4*i}")
            self("s_nop 1")
        if PERST:
            self("v_mbcnt_lo_u32_b32 v1, -1, 0")
            self("v_lshlrev_b32 v1, 2, v1")
            self("s_mov_b32 exec_lo, 0xffffff")
            self("s_mov_b32 exec_hi, 0")
            self(f"buffer_store_dword v60, v1, s[32:35], s50 offen offset:128")
    def pst(self):
        if not PERST: return
        self(f"{MEMT} s[84:85]")
        self("s_mov_b32 m0, s88")
        self("s_waitcnt lgkmcnt(0)")
        self("v_writelane_b32 v60, s84, m0")
        self("s_add_u32 s88, s88, 1")
    def text(self): return "\n".join(self.lines) + "\n"

SLOT = 32768; XOFF = 16384; NSLOT = 5
HST = 14336
HPOSN = [32768 + n*HST for n in range(9)] + [0, HST] + [32768, 32768 + HST, 32768 + 2*HST]
def hbar(pos):
    a = HPOSN[pos]; b = a + HST - 1
    need = 0
    for sl in range(a // SLOT, b // SLOT + 1):
        last = max(st for st in range(16) if st % NSLOT == sl)
        need = max(need, last + 1)
    return need
NAME = "standalone__spectral_fnet__prompt_kernel"

def rot2(e, dst):
    e(f"s_mul_i32 s{dst}, s15, 7")
    e(f"s_add_u32 s{dst}, s{dst}, 1")
    e(f"s_lshr_b32 s{dst}, s{dst}, 1")
    e(f"s_and_b32 s98, s14, 7")
    e(f"s_mul_i32 s98, s98, 7")
    e(f"s_lshr_b32 s98, s98, 2")
    e(f"s_add_u32 s{dst}, s{dst}, s98")
    e(f"s_sub_u32 s98, s{dst}, 14")
    e(f"s_cmp_ge_u32 s{dst}, 14")
    e(f"s_cselect_b32 s{dst}, s98, s{dst}")

def gen():
    e = Em()
    e.lines.append(f".globl {NAME}\n.p2align 8\n.type {NAME},@function\n{NAME}:")
    e("s_cmp_ge_u32 s2, 256")
    e("s_cbranch_scc1 L_done")
    e("s_load_dwordx8 s[4:11], s[0:1], 0")
    e("s_load_dwordx8 s[36:43], s[0:1], 32")
    if STAMP: e("s_memrealtime s[54:55]")
    e.stamp()
    e("v_lshrrev_b32 v1, 6, v0")
    e("v_and_b32 v0, 63, v0")
    e("v_readfirstlane_b32 s17, v1")
    e("s_lshr_b32 s13, s2, 3")
    e("s_and_b32 s15, s13, 3")
    e("s_and_b32 s16, s2, 1")
    e("s_bfe_u32 s14, s2, 0x20001")
    e("s_lshl_b32 s14, s14, 3")
    e("s_lshr_b32 s12, s13, 2")
    e("s_add_u32 s14, s14, s12")
    e("s_lshl_b32 s90, s15, 2")
    e("s_and_b32 s12, s15, 2")
    e("s_sub_u32 s90, s90, s12")
    e("v_lshrrev_b32 v3, 4, v0")
    e("v_lshlrev_b32 v2, 4, v0")
    e("s_mov_b32 s34, 0x10000000"); e("s_mov_b32 s35, 0x00020000")
    e("s_cmp_lt_u32 s17, 4")
    e("s_cbranch_scc1 L_compute")
    if LPRIO: e(f"s_setprio {LPRIO}")
    e("s_sub_u32 s18, s17, 4")
    e("v_lshrrev_b32 v20, 3, v0")
    e("v_and_b32 v21, 7, v0")
    e("v_lshrrev_b32 v22, 1, v20")
    e("v_xor_b32 v23, v22, v21")
    e("v_xor_b32 v24, 4, v23")
    e("v_lshlrev_b32 v25, 12, v20")
    e("v_lshl_add_u32 v23, v23, 4, v25")
    e("v_lshl_add_u32 v24, v24, 4, v25")
    for q in range(8):
        e(f"v_add_u32 v{4+q}, {8*q*4096 - 1024*(q&3)}, v{24 if q & 1 else 23}")
    e("v_and_b32 v22, 15, v0")
    e("v_lshlrev_b32 v23, 2, v3")
    e("v_xor_b32 v22, v22, v23")
    e("v_xor_b32 v24, 2, v22")
    e("v_mul_u32_u24 v23, 896, v3")
    e("v_lshl_add_u32 v22, v22, 4, v23")
    e("v_lshl_add_u32 v24, v24, 4, v23")
    for q in range(8):
        e(f"v_add_u32 v{12+q}, {4*q*896 - 1024*(q&3)}, v{24 if (q>>1)&1 else 22}")
    e("s_lshl_b32 s52, s14, 18")
    e("s_lshl_b32 s49, s16, 11")
    e("s_add_u32 s52, s52, s49")
    e("s_lshl_b32 s53, s16, 10")
    e("s_lshl_b32 s50, s18, 5")
    e("s_add_u32 s53, s53, s50")
    e("s_mul_i32 s53, s53, 896")
    e("s_lshl_b32 s50, s90, 6")
    e("s_add_u32 s53, s53, s50")
    e("s_lshl_b32 s50, s18, 13")
    e(f"s_add_u32 s51, s50, {SLOT*NSLOT}")
    e("s_mov_b32 s26, 0x800000"); e("s_mov_b32 s27, 0x00020000")
    e("s_mov_b32 s30, 1835008"); e("s_mov_b32 s31, 0x00020000")
    e("s_mov_b32 s46, 401408"); e("s_mov_b32 s47, 0x00020000")
    e("s_mov_b32 s3, 0")
    e("s_cmp_eq_u32 s18, 1")
    e("s_waitcnt lgkmcnt(0)")
    e("s_cselect_b32 s24, s8, s6")
    e("s_cselect_b32 s25, s9, s7")
    e("s_mov_b32 s28, s4"); e("s_mov_b32 s29, s5")
    e("s_mov_b32 s32, s42"); e("s_mov_b32 s33, s43")
    e("s_mov_b32 s44, s10"); e("s_mov_b32 s45, s11")
    e("s_getpc_b64 s[86:87]")
    e("s_add_u32 s86, s86, L_after0 - . + 4 - 4")
    e.lines.pop(); e.lines.pop()
    e("s_call_b64 s[86:87], L_issue")
    e("s_branch L_lcont")
    e.label("L_issue")
    for part in range(2):
        for q in range(8):
            if (q & 3) == 0:
                e(f"s_add_u32 m0, s50, {part*XOFF + q*1024}")
                e("s_nop 0")
            off = f" offset:{1024*(q&3)}"
            if part == 0:
                e(f"buffer_load_dwordx4 v{4+q}, s[24:27], s52 offen{off} lds")
            else:
                e(f"buffer_load_dwordx4 v{12+q}, s[28:31], s53 offen{off} lds")
    e("s_add_u32 s52, s52, 128")
    e(f"s_add_u32 s53, s53, {64*896}")
    e(f"s_add_u32 s50, s50, {SLOT}")
    e(f"s_sub_u32 s49, s50, {SLOT*NSLOT}")
    e("s_cmp_ge_u32 s50, s51")
    e("s_cselect_b32 s50, s49, s50")
    e("s_setpc_b64 s[86:87]")
    e.label("L_lcont")
    e("s_call_b64 s[86:87], L_issue")
    e.stamp()
    e("s_lshl_b32 s12, s18, 3")
    e("v_add_u32 v27, s12, v20")
    for n in range(7):
        e(f"v_add_u32 v23, {16*n}, v27")
        e("v_bfe_u32 v24, v23, 1, 3")
        e("v_xor_b32 v24, v24, v21")
        if n < 6:
            e("v_bfe_u32 v25, v23, 2, 2")
            e("v_and_b32 v26, 3, v23")
            e("v_lshl_add_u32 v25, v25, 3, v26")
            e(f"v_add_u32 v23, {32*(n>>1) + 4*(n&1)}, v25")
        e("v_mul_u32_u24 v23, 896, v23")
        e(f"v_lshl_add_u32 v{32+n}, v24, 4, v23")
    e("s_mul_i32 s19, s15, 100352")
    e("s_lshl_b32 s12, s18, 10")
    rot2(e, 91)
    if PERST: e("s_mov_b32 s88, 0")
    if LOOK == 4:
        e("s_waitcnt vmcnt(16)")
        e("s_barrier"); e.pst()
        e("s_call_b64 s[86:87], L_issue")
        e("s_call_b64 s[86:87], L_issue")
        e("s_waitcnt vmcnt(32)")
        e("s_barrier"); e.pst()
        e("s_call_b64 s[86:87], L_issue")
        e("s_call_b64 s[86:87], L_issue")
        e("s_mov_b32 s3, 2")
    elif LOOK == 3:
        e("s_waitcnt vmcnt(16)")
        e("s_barrier"); e.pst()
        e("s_call_b64 s[86:87], L_issue")
        e("s_call_b64 s[86:87], L_issue")
        e("s_mov_b32 s3, 1")
    e.label("L_lloop")
    e(f"s_waitcnt vmcnt({16*(LOOK-1)})")
    e("s_barrier"); e.pst()
    e("s_call_b64 s[86:87], L_issue")
    e("s_add_u32 s3, s3, 1")
    e(f"s_cmp_lt_u32 s3, {16-LOOK}")
    e("s_cbranch_scc1 L_lloop")
    e.vm = [("s", st) for st in range(16-LOOK, 16) for _ in range(16)]
    def hstage(pos):
        e(f"s_add_u32 s92, s12, {HPOSN[pos]}")
        e("s_call_b64 s[86:87], L_hissue")
        e.vm += [("h", pos)]*7
    hn = 0
    for b in range(16-LOOK, 17):
        if b < 16: e.wait_vm({("s", b)})
        e("s_barrier"); e.pst()
        cnt = 0
        while hn < (11 - HLATE) and hbar(hn) <= b and (cnt < HPB or b == 16):
            hstage(hn); hn += 1; cnt += 1
    e.stamp()
    e("s_barrier"); e.pst()
    early = set(("h", p_) for p_ in range(11 - HLATE))
    for p_ in range(11 - HLATE, 11): hstage(p_)
    e.wait_vm(early)
    e.stamp()
    e("s_barrier"); e.pst()
    e.wait_vm_all()
    e("s_barrier"); e.pst()
    hstage(11); hstage(12); hstage(13)
    e.wait_vm_all()
    e("s_barrier"); e.pst()
    if not NOB20: e("s_barrier"); e.pst()
    e("s_barrier"); e.pst()
    e("s_branch L_end")
    e.label("L_hissue")
    e("s_sub_u32 s53, s91, 7")
    e("s_cmp_ge_u32 s91, 7")
    e("s_cselect_b32 s52, s53, s91")
    e("s_cselect_b32 s44, s36, s10")
    e("s_cselect_b32 s45, s37, s11")
    e("s_lshl_b32 s52, s52, 7")
    e("s_add_u32 s52, s52, s19")
    for n in range(7):
        e(f"s_add_u32 m0, s92, {n*2048}")
        e("s_nop 0")
        e(f"buffer_load_dwordx4 v{32+n}, s[44:47], s52 offen lds")
    e("s_add_u32 s91, s91, 1")
    e("s_cmp_ge_u32 s91, 14")
    e("s_cselect_b32 s91, 0, s91")
    e("s_setpc_b64 s[86:87]")
    nst_l = e.nst
    e.label("L_compute")
    e.vm = []; e.lg = []
    e.nst = 1
    if CPRIO: e(f"s_setprio {CPRIO}")
    if CPF:
        e("s_getpc_b64 s[26:27]")
        e.label("L_pcref")
        e(f"s_sub_u32 s26, s26, L_pcref - {NAME}")
        e("s_subb_u32 s27, s27, 0")
        e("s_lshl_b32 s12, s17, 13")
        e("v_lshlrev_b32 v45, 7, v0")
        e("v_add_u32 v45, s12, v45")
        e(f"v_min_u32 v45, L_codeend - {NAME} - 4, v45")
        e("s_cmp_ge_u32 s17, 2")
        e("s_cbranch_scc1 L_nocpf")
        e("global_load_dword v46, v45, s[26:27]")
        e.label("L_nocpf")
    e("s_lshr_b32 s18, s17, 1")
    e("s_and_b32 s19, s17, 1")
    e("s_lshl_b32 s24, s16, 1")
    e("s_add_u32 s24, s24, s18")
    e("s_lshl_b32 s24, s24, 7")
    e("s_lshl_b32 s12, s14, 2")
    e("s_add_u32 s24, s24, s12")
    e("s_mul_i32 s24, s24, 14")
    e("s_add_u32 s24, s24, s90")
    e("s_lshl_b32 s12, s19, 1")
    e("s_add_u32 s24, s24, s12")
    e("s_lshl_b32 s24, s24, 10")
    e("s_add_u32 s25, s24, 1024")
    e("s_lshl_b32 s12, s15, 1")
    e("s_add_u32 s12, s12, s19")
    e("s_cmp_eq_u32 s12, 4")
    e("s_cselect_b32 s24, s25, s24")
    e("s_cselect_b32 s31, 4, 0")
    e("s_sub_u32 s12, s12, 3")
    e("s_cmp_lt_u32 s12, 2")
    e("s_cselect_b32 s25, 0x7f000000, s25")
    e("s_cselect_b32 s89, 1, 0")
    for u in range(4):
        e(f"v_add_u32 v{40+u}, {u*14336}, v2")
    e("v_mov_b64 v[14:15], 0")
    e("v_mov_b32 v12, 0")
    e("v_mov_b32 v13, 1")
    e("s_mov_b32 s50, 256"); e("s_mov_b32 s51, 0x00020000")
    e("s_mov_b32 s22, 1835008"); e("s_mov_b32 s23, 0x00020000")
    e("s_lshl_b32 s52, s14, 7")
    e(f"s_add_u32 s52, s52, {0xF000000}")
    e("s_lshl_b32 s53, s16, 2")
    e("s_add_u32 s53, s53, s15")
    e("s_waitcnt lgkmcnt(0)")
    e("s_mov_b32 s32, s42"); e("s_mov_b32 s33, s43")
    e("s_mov_b32 s20, s38"); e("s_mov_b32 s21, s39")
    e("s_mov_b32 s48, s40"); e("s_mov_b32 s49, s41")
    e("s_or_b32 s12, s53, s17")
    e("s_cmp_lg_u32 s12, 0")
    e("s_cbranch_scc1 L_noclear")
    e("s_mov_b64 exec, 1")
    e("buffer_store_dwordx2 v[14:15], v12, s[32:35], s52 offen sc1")
    e("s_waitcnt vmcnt(0)")
    e("s_lshl_b32 s12, s14, 2")
    e("buffer_store_dword v13, v12, s[48:51], s12 offen sc1")
    e("s_mov_b64 exec, -1")
    e.label("L_noclear")
    e("s_add_u32 s53, s53, s52")
    AB = 16
    AC = 22
    e("v_and_b32 v5, 15, v0")
    e("v_lshrrev_b32 v12, 1, v5")
    e("v_xor_b32 v12, v12, v3")
    e("v_lshlrev_b32 v12, 4, v12")
    e("v_lshl_add_u32 v12, v5, 7, v12")
    e("s_lshl_b32 s12, s18, 13")
    e(f"v_add_u32 v{AB}, s12, v12")
    e(f"v_xor_b32 v{AB+1}, 64, v{AB}")
    e("v_bfe_u32 v5, v0, 2, 2")
    e("v_lshl_add_u32 v12, v3, 3, v5")
    e("v_lshlrev_b32 v12, 8, v12")
    e(f"v_add_u32 v12, {XOFF}, v12")
    e("v_and_b32 v13, 3, v0")
    e("v_lshrrev_b32 v14, 1, v13")
    e("v_xor_b32 v14, v14, v13")
    e("v_and_b32 v14, 1, v14")
    e("v_lshl_add_u32 v12, v14, 3, v12")
    e("v_and_b32 v14, 1, v3")
    e("v_lshlrev_b32 v14, 1, v14")
    e("v_xor_b32 v13, v13, v14")
    e("v_lshl_add_u32 v13, v5, 2, v13")
    e("s_lshl_b32 s12, s19, 3")
    e("s_xor_b32 s12, s12, s31")
    e("v_xor_b32 v13, s12, v13")
    for pp in range(2):
        e(f"v_xor_b32 v14, {4*pp}, v13")
        e(f"v_lshl_add_u32 v{AB+2+pp}, v14, 4, v12")
        e(f"v_xor_b32 v{AB+4+pp}, 8, v{AB+2+pp}")
    for t in range(6):
        e(f"v_mov_b32 v{AC+t}, v{AB+t}")
    ACC = 48; FR = 112
    def acc(T, u): return ACC + (T*4+u)*4
    def xf(buf, T): return FR + buf*32 + T*4
    def cf(buf, u): return FR + buf*32 + 16 + u*4
    for r in range(0, 64, 2):
        e(f"v_mov_b64 v[{ACC+r}:{ACC+r+1}], 0")
    e("v_mov_b32 v12, 0")
    e("v_mov_b32 v13, 1")
    e("s_mov_b32 vcc_lo, 0xffff0000")
    e("s_mov_b32 vcc_hi, 0x0000ffff")
    e("s_cmp_eq_u32 s18, 1")
    e("s_cselect_b32 s12, 0x80008000, 0")
    def reads(kk, NT=4):
        buf = kk
        out = []
        def xr(T):
            reg = AC + 2 + 2*(T & 1) + (T >> 1)
            for h in range(2):
                off = kk*8192 + h*1024
                d = xf(buf, T) + 2*h
                out.append((f"ds_read_b64_tr_b16 v[{d}:{d+1}], v{reg} offset:{off}", ("f", kk, "x", T)))
        def cr(u):
            d = cf(buf, u)
            out.append((f"ds_read_b128 v[{d}:{d+3}], v{AC+kk} offset:{u*2048}", ("f", kk, "c", u)))
        xr(0)
        for u in range(4): cr(u)
        for T in range(1, NT): xr(T)
        return out
    e("s_mov_b32 s28, 0")
    e("s_mov_b32 s29, 0")
    e.stamp()
    e("s_barrier")
    e.stamp()
    def mainloop(NT, lab):
        e.lg = []
        for s_, tag in reads(0, NT): e.lds(s_, tag)
        e.label(lab)
        for kk in range(2):
            nxt = reads(1 - kk, NT)
            ri = 0; mi = 0
            BARPOS = 3 if kk == 1 else 0
            nsl = NT*4
            for T in range(NT):
                for u in range(4):
                    e.wait_lg({("f", kk, "x", T), ("f", kk, "c", u)})
                    x = xf(kk, T); c = cf(kk, u); a = acc(T, u)
                    e(f"v_mfma_f32_16x16x32_bf16 v[{a}:{a+3}], v[{x}:{x+3}], v[{c}:{c+3}], v[{a}:{a+3}]")
                    if kk == 1 and mi < 3:
                        if mi == 0:
                            e(f"s_add_u32 s29, s29, {SLOT}")
                            e(f"s_cmp_ge_u32 s29, {SLOT*NSLOT}")
                            e("s_cselect_b32 s29, 0, s29")
                        for t in range(2*mi, 2*mi+2):
                            e(f"v_add_u32 v{AC+t}, s29, v{AB+t}")
                    if kk == 1 and mi == BARPOS:
                        e.wait_lg_all()
                        e("s_barrier")
                    if mi >= BARPOS and ri < len(nxt):
                        n_ = 2 if ((kk == 1 and mi < BARPOS + 2) or NT == 2) else 1
                        for _ in range(n_):
                            if ri < len(nxt):
                                e.lds(*nxt[ri]); ri += 1
                    mi += 1
            assert ri == len(nxt)
        e("s_add_u32 s28, s28, 1")
        e("s_cmp_lt_u32 s28, 16")
        e(f"s_cbranch_scc1 {lab}")
    if SKIPH:
        e("s_cmp_eq_u32 s89, 1")
        e("s_cbranch_scc0 L_full")
        mainloop(2, "L_mainh")
        e("s_branch L_mdone")
        e.label("L_full")
    mainloop(4, "L_main")
    e.label("L_mdone")
    e.stamp()
    e("s_lshl_b32 s3, s14, 2")
    e("s_load_dword s30, s[40:41], s3")
    e("s_nop 2")
    tmp = 192
    for u in range(4):
        for pp in range(2):
            t = tmp; tmp += 8
            a = acc(2*pp, u); b = acc(2*pp+1, u)
            e(f"v_cvt_pk_bf16_f32 v{t}, v{a}, v{a+1}")
            e(f"v_cvt_pk_bf16_f32 v{t+1}, v{a+2}, v{a+3}")
            e(f"v_cvt_pk_bf16_f32 v{t+2}, v{b}, v{b+1}")
            e(f"v_cvt_pk_bf16_f32 v{t+3}, v{b+2}, v{b+3}")
            for r in range(4): e(f"v_xor_b32 v{t+r}, s12, v{t+r}")
            e(f"v_cndmask_b32 v{t+4}, v{t}, v{t+2}, vcc")
            e(f"v_cndmask_b32 v{t+5}, v{t+1}, v{t+3}, vcc")
            e(f"v_cndmask_b32 v{t+6}, v{t+2}, v{t}, vcc")
            e(f"v_cndmask_b32 v{t+7}, v{t+3}, v{t+1}, vcc")
            e(f"buffer_store_dwordx4 v[{t+4}:{t+7}], v{40+u}, s[32:35], s{24+pp} offen sc1")
    e.stamp()
    A2 = 32; PF = 88; HF = 200
    def acc2(T, u): return A2 + (T*2+u)*4
    e("s_waitcnt lgkmcnt(0)")
    e.lg = []
    e("v_and_b32 v4, 15, v0")
    e("v_lshrrev_b32 v5, 1, v4")
    e("s_lshl_b32 s24, s19, 2")
    e("v_add_u32 v6, s24, v3")
    e("v_xor_b32 v5, v5, v6")
    e("v_lshlrev_b32 v5, 4, v5")
    e("v_lshl_add_u32 v5, v4, 7, v5")
    e("s_lshl_b32 s24, s14, 2")
    e("s_lshl_b32 s25, s16, 1")
    e("s_add_u32 s24, s24, s25")
    e("s_mul_i32 s24, s24, 14336")
    e("s_lshl_b32 s25, s19, 10")
    e("s_add_u32 s24, s24, s25")
    rot2(e, 26)
    e("s_add_u32 s26, s26, s18")
    for idx in range(7):
        e(f"s_add_u32 s25, s26, {2*idx}")
        e("s_sub_u32 s27, s25, 14")
        e("s_cmp_ge_u32 s25, 14")
        e("s_cselect_b32 s25, s27, s25")
        e("s_sub_u32 s27, s25, 7")
        e("s_cmp_ge_u32 s25, 7")
        e("s_cselect_b32 s25, s27, s25")
        e(f"s_cselect_b32 s27, {128*14336}, 0")
        e("s_lshl_b32 s25, s25, 11")
        e("s_add_u32 s25, s25, s27")
        e(f"s_add_u32 s{91+idx}, s25, s24")
    e("v_mov_b32 v24, v2")
    e("v_add_u32 v25, 14336, v2")
    e(f"v_add_u32 v26, {256*14336}, v2")
    e(f"v_add_u32 v27, {257*14336}, v2")
    e.vm = [("st",)]*8
    def pload(idx, track=True):
        for kp in range(2):
            for u in range(2):
                r = PF + (idx*4 + kp*2 + u)*4
                s_ = f"buffer_load_dwordx4 v[{r}:{r+3}], v{24+kp*2+u}, s[32:35], s{91+idx} offen sc1"
                if track: e.vmem(s_, ("p", idx))
                else: e(s_)
    e("s_cmp_eq_u32 s18, 1")
    for idx in range(7):
        e(f"s_mov_b32 s24, {HPOSN[2*idx]}")
        e(f"s_cselect_b32 s24, {HPOSN[1+2*idx]}, s24")
        e(f"v_add_u32 v{16+idx}, s24, v5")
    for r in range(0, 56, 2):
        e(f"v_mov_b64 v[{A2+r}:{A2+r+1}], 0")
    e.wait_vm_all()
    e.stamp()
    e("s_barrier")
    e("s_cmp_lg_u32 s17, 0")
    e("s_cbranch_scc1 L_nopoll")
    e("s_mov_b64 exec, 1")
    e("s_cmp_eq_u32 s30, 1")
    e("s_cbranch_scc0 L_clrslow")
    e.label("L_clrok")
    e("buffer_store_byte v13, v12, s[32:35], s53 offen sc1")
    e("s_mov_b32 s28, 0")
    e.label("L_poll")
    e("buffer_load_dwordx2 v[14:15], v12, s[32:35], s52 offen sc1")
    e("s_add_u32 s28, s28, 1")
    e("s_waitcnt vmcnt(0)")
    e("v_and_b32 v14, v14, v15")
    e("s_nop 0")
    e("v_readfirstlane_b32 s12, v14")
    e("s_cmp_eq_u32 s12, 0x01010101")
    e("s_cbranch_scc1 L_pollx")
    if SLEEP: e(f"s_sleep {SLEEP}")
    e("s_cmp_lt_u32 s28, 0x400000")
    e("s_cbranch_scc1 L_poll")
    e.label("L_pollx")
    e("s_mov_b64 exec, -1")
    e.label("L_nopoll")
    e("s_barrier")
    e.stamp()
    for idx in range(NPRE): pload(idx)
    def hreads(idx):
        out = []
        for T in range(7):
            d = HF + (idx & 1)*28 + T*4
            out.append((f"ds_read_b128 v[{d}:{d+3}], v{16+idx} offset:{T*2048}", ("h", idx, T)))
        return out
    if not PSUM:
        for s_, tag in hreads(0): e.lds(s_, tag)
        slow = []
        for idx in range(7):
            if idx == 1:
                e.wait_lg_all()
                e("s_barrier")
            if idx == 4:
                e("s_barrier")
            e.wait_vm({("p", idx)})
            if idx == 0: e.stamp()
            if idx + NPRE < 7: pload(idx + NPRE)
            nxt = hreads(idx+1) if idx < 6 else []
            ri = 0
            for T in range(7):
                e.wait_lg({("h", idx, T)})
                h = HF + (idx & 1)*28 + T*4
                for kp in range(2):
                    for u in range(2):
                        p = PF + (idx*4 + kp*2 + u)*4; a = acc2(T, u)
                        e(f"v_mfma_f32_16x16x32_bf16 v[{a}:{a+3}], v[{h}:{h+3}], v[{p}:{p+3}], v[{a}:{a+3}]")
                        if ri < len(nxt) and kp == 1 and u == 0:
                            e.lds(*nxt[ri]); ri += 1
            while ri < len(nxt):
                e.lds(*nxt[ri]); ri += 1
    else:
        for s_, tag in hreads(0): e.lds(s_, tag)
        e("s_mov_b32 s24, 0x05040100")
        e("s_mov_b32 s25, 0x07060302")
        e("v_mov_b32 v28, 0x3f803f80")
        def sums(idx):
            out = []
            for u in range(2):
                for r in range(4):
                    A = PF + (idx*4 + u)*4 + r; B = PF + (idx*4 + 2 + u)*4 + r
                    t0 = 4 + 2*(r & 1); t1 = t0 + 1
                    if PSUM == 1:
                        out.append(f"v_perm_b32 v{t0}, v{B}, v{A}, s24")
                        out.append(f"v_perm_b32 v{t1}, v{B}, v{A}, s25")
                        out.append(f"v_dot2_f32_bf16 v{t0}, v{t0}, v28, 0")
                        out.append(f"v_dot2_f32_bf16 v{t1}, v{t1}, v28, 0")
                        out.append("s_nop 2")
                        out.append(f"v_cvt_pk_bf16_f32 v{A}, v{t0}, v{t1}")
                    else:
                        t2 = 8 + 2*(r & 1); t3 = t2 + 1
                        out.append(f"v_lshlrev_b32 v{t0}, 16, v{A}")
                        out.append(f"v_and_b32 v{t1}, 0xffff0000, v{A}")
                        out.append(f"v_lshlrev_b32 v{t2}, 16, v{B}")
                        out.append(f"v_and_b32 v{t3}, 0xffff0000, v{B}")
                        out.append(f"v_add_f32 v{t0}, v{t0}, v{t2}")
                        out.append(f"v_add_f32 v{t1}, v{t1}, v{t3}")
                        out.append(f"v_cvt_pk_bf16_f32 v{A}, v{t0}, v{t1}")
            return out
        e.wait_vm({("p", 0)})
        e.stamp()
        if NPRE < 7: pload(NPRE)
        for s_ in sums(0): e(s_)
        for idx in range(7):
            if idx == 1:
                e.wait_lg_all()
                e("s_barrier")
            if idx == 4:
                e("s_barrier")
            va = []
            if idx < 6:
                e.wait_vm({("p", idx+1)})
                if idx + 1 + NPRE < 7: pload(idx + 1 + NPRE)
                va = sums(idx+1)
            else:
                e("s_nop 1")
            nxt = hreads(idx+1) if idx < 6 else []
            ri = 0; vi = 0
            per = -(-len(va) // 14)
            for T in range(7):
                e.wait_lg({("h", idx, T)})
                h = HF + (idx & 1)*28 + T*4
                for u in range(2):
                    p = PF + (idx*4 + u)*4; a_ = acc2(T, u)
                    e(f"v_mfma_f32_16x16x32_bf16 v[{a_}:{a_+3}], v[{h}:{h+3}], v[{p}:{p+3}], v[{a_}:{a_+3}]")
                    if ri < len(nxt) and u == 0:
                        e.lds(*nxt[ri]); ri += 1
                    for _ in range(per):
                        if vi < len(va):
                            e(va[vi]); vi += 1
            while ri < len(nxt):
                e.lds(*nxt[ri]); ri += 1
            while vi < len(va):
                e(va[vi]); vi += 1
            e("s_nop 1")
    e.vm = []; e.lg = []
    e.stamp()
    RS = 81920
    e("s_mul_i32 s48, s17, 14336")
    e(f"s_add_u32 s48, s48, {RS}")
    e("v_add_u32 v4, s48, v2")
    e("v_and_b32 v5, 15, v0")
    e("v_mul_u32_u24 v5, 896, v5")
    e("v_lshl_add_u32 v7, v3, 4, v5")
    e("v_lshl_add_u32 v8, v3, 3, v5")
    e("s_lshl_b32 s48, s14, 1")
    e("s_add_u32 s48, s48, s16")
    e("s_mul_i32 s48, s48, 28672")
    e("s_mul_i32 s49, s15, 224")
    e("s_add_u32 s48, s48, s49")
    for ii in range(2):
        e("s_lshl_b32 s24, s17, 1")
        if ii: e("s_add_u32 s24, s24, 1")
        e("s_sub_u32 s25, s24, 3")
        e("s_cmp_ge_u32 s24, 3")
        e("s_cselect_b32 s24, s25, s24")
        e("s_cselect_b32 s25, 1, 0")
        e("s_lshl_b32 s26, s24, 12")
        e("s_lshl_b32 s27, s25, 10")
        e("s_add_u32 s26, s26, s27")
        e(f"s_add_u32 s26, s26, {RS}")
        e(f"v_add_u32 v{10+ii}, s26, v2")
        e("s_mul_i32 s25, s25, 14336")
        e("s_lshl_b32 s24, s24, 6")
        e("s_add_u32 s24, s24, s25")
        e(f"s_add_u32 s{91+ii}, s24, s48")
    if not NOB20: e("s_barrier")
    for T in range(7):
        for u in range(2):
            a = acc2(T, u)
            e(f"ds_write_b128 v4, v[{a}:{a+3}] offset:{(T*2+u)*1024}")
    e("s_waitcnt lgkmcnt(0)")
    e("s_barrier")
    e("s_cmp_eq_u32 s17, 3")
    e("s_cbranch_scc1 L_fin3")
    def red(r, o):
        for q in range(4):
            e(f"v_add_f32 v{r+q}, v{r+q}, v{r+4+q}")
            e(f"v_add_f32 v{r+8+q}, v{r+8+q}, v{r+12+q}")
        for q in range(4):
            e(f"v_add_f32 v{r+q}, v{r+q}, v{r+8+q}")
        e(f"v_cvt_pk_bf16_f32 v{o}, v{r}, v{r+1}")
        e(f"v_cvt_pk_bf16_f32 v{o+1}, v{r+2}, v{r+3}")
    for ii in range(2):
        for ti in range(2):
            for ww in range(4):
                r = 88 + ii*32 + (ti*4+ww)*4
                e(f"ds_read_b128 v[{r}:{r+3}], v{10+ii} offset:{ww*14336 + ti*2048}")
    for ii in range(2):
        e(f"s_waitcnt lgkmcnt({8 if ii == 0 else 0})")
        for ti in range(2):
            red(88 + ii*32 + ti*16, 160 + ii*4 + 2*ti)
        e(f"buffer_store_dwordx4 v[{160+ii*4}:{163+ii*4}], v7, s[20:23], s{91+ii} offen {OUTF}")
    e("s_branch L_end")
    e.label("L_fin3")
    e(f"v_add_u32 v10, {RS + 12*1024}, v2")
    e("s_add_u32 s49, s48, 14336")
    for u in range(2):
        for ww in range(4):
            r = 88 + u*16 + ww*4
            e(f"ds_read_b128 v[{r}:{r+3}], v10 offset:{ww*14336 + u*1024}")
    e("s_waitcnt lgkmcnt(0)")
    for u in range(2):
        red(88 + u*16, 160 + 2*u)
        e(f"buffer_store_dwordx2 v[{160+2*u}:{161+2*u}], v8, s[20:23], s{48+u} offen offset:192 {OUTF}")
    e.label("L_end")
    if STAMP:
        e("s_waitcnt vmcnt(0)")
        e.nst = max(nst_l, e.nst)
        e.stamp()
        e.stamp_flush()
    e.label("L_done")
    e("s_endpgm")
    e.label("L_clrslow")
    e("s_sleep 8")
    e("buffer_load_dword v14, v12, s[48:51], s3 offen sc1")
    e("s_add_u32 s28, s28, 1")
    e("s_waitcnt vmcnt(0)")
    e("v_readfirstlane_b32 s30, v14")
    e("s_cmp_eq_u32 s30, 1")
    e("s_cbranch_scc1 L_clrok")
    e("s_cmp_lt_u32 s28, 0x400000")
    e("s_cbranch_scc1 L_clrslow")
    e("s_branch L_clrok")
    e.label("L_codeend")
    return e.text()

hdr = open("standalone__spectral_fnet__prompt.s.ref").read().split("; Override")[0]
out = hdr
out += f"; @launch grid=(256,1,1) block=(384,1,1) lds=163840\n"
out += '.amdgcn_target "amdgcn-amd-amdhsa--gfx950"\n.text\n'
out += gen()
out += f'''.section .rodata,"a"
.p2align 6
.amdhsa_kernel {NAME}
  .amdhsa_next_free_vgpr 256
  .amdhsa_next_free_sgpr 102
  .amdhsa_accum_offset 256
  .amdhsa_group_segment_fixed_size 0
  .amdhsa_kernarg_size 64
  .amdhsa_user_sgpr_count 2
  .amdhsa_user_sgpr_kernarg_segment_ptr 1
  .amdhsa_system_sgpr_workgroup_id_x 1
.end_amdhsa_kernel
'''
open(sys.argv[1], "w").write(out)
```

```python
import sys
def opt(name, default):
    for a in sys.argv:
        if a.startswith(f"--{name}="): return type(default)(a.split("=")[1])
    return default
STAMP = '--stamp' in sys.argv
MEMT = 's_memrealtime' if '--rt' in sys.argv else 's_memtime'
SLEEP = opt("sleep", 4)
NPRE = opt("npre", 2)
LOOK = opt("look", 4)
HPB = opt("hpb", 3)
CHKST = opt("chkst", 12)
PERST = opt("perst", 0)
HLATE = opt("hlate", 0)
LPRIO = opt("lprio", 0)
CPRIO = opt("cprio", 0)
OUTF = opt("outf", "")
SKIPH = opt("skiph", 1)
PSUM = opt("psum", 0)
CPF = opt("cpf", 0)
NOB20 = opt("nob20", 0)
ORD = opt("ord", 0)
NTC = opt("ntc", 0)
NTX = opt("ntx", 0)

class Em:
    def __init__(self):
        self.lines = []; self.vm = []; self.lg = []; self.nst = 0
    def __call__(self, s): self.lines.append("    " + s)
    def label(self, s): self.lines.append(s + ":")
    def vmem(self, s, tag): self(s); self.vm.append(tag)
    def lds(self, s, tag): self(s); self.lg.append(tag)
    def wait_vm(self, tags):
        idx = [i for i, t in enumerate(self.vm) if t in tags]
        if not idx: return
        n = min(len(self.vm) - 1 - max(idx), 63)
        self(f"s_waitcnt vmcnt({n})")
        self.vm = self.vm[len(self.vm) - n:] if n > 0 else []
    def wait_lg(self, tags):
        idx = [i for i, t in enumerate(self.lg) if t in tags]
        if not idx: return
        n = min(len(self.lg) - 1 - max(idx), 15)
        self(f"s_waitcnt lgkmcnt({n})")
        self.lg = self.lg[len(self.lg) - n:] if n > 0 else []
    def wait_lg_all(self): self("s_waitcnt lgkmcnt(0)"); self.lg = []
    def wait_vm_all(self): self("s_waitcnt vmcnt(0)"); self.vm = []
    def stamp(self):
        if not STAMP: return
        self.nst += 1
        r = 58 + 2*self.nst
        assert r < 84
        self(f"{MEMT} s[{r}:{r+1}]")
    def stamp_flush(self):
        if not STAMP: return
        self("s_memrealtime s[56:57]")
        self("s_waitcnt lgkmcnt(0)")
        self("s_lshl_b32 s50, s2, 3")
        self("s_add_u32 s50, s50, s17")
        self("s_lshl_b32 s50, s50, 8")
        self(f"s_add_u32 s50, s50, {0x1000000}")
        self("v_mov_b32 v1, 0")
        regs = [54, 56] + [58 + 2*i for i in range(1, self.nst+1)]
        for i, r in enumerate(regs):
            self(f"v_mov_b32 v3, s{r}")
            self(f"buffer_store_dword v3, v1, s[32:35], s50 offen offset:{4*i}")
            self("s_nop 1")
        if PERST:
            self("v_mbcnt_lo_u32_b32 v1, -1, 0")
            self("v_lshlrev_b32 v1, 2, v1")
            self("s_mov_b32 exec_lo, 0xffffff")
            self("s_mov_b32 exec_hi, 0")
            self(f"buffer_store_dword v60, v1, s[32:35], s50 offen offset:128")
    def pst(self):
        if not PERST: return
        self(f"{MEMT} s[84:85]")
        self("s_mov_b32 m0, s88")
        self("s_waitcnt lgkmcnt(0)")
        self("v_writelane_b32 v60, s84, m0")
        self("s_add_u32 s88, s88, 1")
    def text(self): return "\n".join(self.lines) + "\n"

SLOT = 32768; XOFF = 16384; NSLOT = 5
HST = 14336
HPOSN = [32768 + n*HST for n in range(9)] + [0, HST] + [32768, 32768 + HST, 32768 + 2*HST]
def hbar(pos):
    a = HPOSN[pos]; b = a + HST - 1
    need = 0
    for sl in range(a // SLOT, b // SLOT + 1):
        last = max(st for st in range(16) if st % NSLOT == sl)
        need = max(need, last + 1)
    return need
NAME = "standalone__spectral_fnet__prompt_kernel"

def ord_tables():
    tabs = []
    for ph in range(4):
        if ORD == 1:
            order = [(t + 4*ph) & 15 for t in range(16)]
        elif ORD == 2:
            lead_t = {0: ph}
            for r in range(1, 4): lead_t[4*(r-1) + 1 + ph] = 4*r + ph
            fq = [4*r + ((ph + d) & 3) for r in range(4) for d in (1, 2, 3)]
            order = []
            for t in range(16):
                order.append(lead_t[t] if t in lead_t else fq.pop(0))
        elif ORD == 3:
            order = [4*r + ((ph + d) & 3) for r in range(4) for d in range(4)]
        assert sorted(order) == list(range(16))
        v = 0
        for t, s_ in enumerate(order): v |= s_ << (4*t)
        tabs.append(v)
    return tabs
def rot2(e, dst):
    e(f"s_mul_i32 s{dst}, s15, 7")
    e(f"s_add_u32 s{dst}, s{dst}, 1")
    e(f"s_lshr_b32 s{dst}, s{dst}, 1")
    e(f"s_and_b32 s98, s14, 7")
    e(f"s_mul_i32 s98, s98, 7")
    e(f"s_lshr_b32 s98, s98, 2")
    e(f"s_add_u32 s{dst}, s{dst}, s98")
    e(f"s_sub_u32 s98, s{dst}, 14")
    e(f"s_cmp_ge_u32 s{dst}, 14")
    e(f"s_cselect_b32 s{dst}, s98, s{dst}")

def gen():
    e = Em()
    e.lines.append(f".globl {NAME}\n.p2align 8\n.type {NAME},@function\n{NAME}:")
    e("s_cmp_ge_u32 s2, 256")
    e("s_cbranch_scc1 L_done")
    e("s_load_dwordx8 s[4:11], s[0:1], 0")
    e("s_load_dwordx8 s[36:43], s[0:1], 32")
    if STAMP: e("s_memrealtime s[54:55]")
    e.stamp()
    e("v_lshrrev_b32 v1, 6, v0")
    e("v_and_b32 v0, 63, v0")
    e("v_readfirstlane_b32 s17, v1")
    e("s_lshr_b32 s13, s2, 3")
    e("s_and_b32 s15, s13, 3")
    e("s_and_b32 s16, s2, 1")
    e("s_bfe_u32 s14, s2, 0x20001")
    e("s_lshl_b32 s14, s14, 3")
    e("s_lshr_b32 s12, s13, 2")
    e("s_add_u32 s14, s14, s12")
    e("s_lshl_b32 s90, s15, 2")
    e("s_and_b32 s12, s15, 2")
    e("s_sub_u32 s90, s90, s12")
    e("v_lshrrev_b32 v3, 4, v0")
    e("v_lshlrev_b32 v2, 4, v0")
    e("s_mov_b32 s34, 0x10000000"); e("s_mov_b32 s35, 0x00020000")
    e("s_cmp_lt_u32 s17, 4")
    e("s_cbranch_scc1 L_compute")
    if LPRIO: e(f"s_setprio {LPRIO}")
    e("s_sub_u32 s18, s17, 4")
    e("v_lshrrev_b32 v20, 3, v0")
    e("v_and_b32 v21, 7, v0")
    e("v_lshrrev_b32 v22, 1, v20")
    e("v_xor_b32 v23, v22, v21")
    e("v_xor_b32 v24, 4, v23")
    e("v_lshlrev_b32 v25, 12, v20")
    e("v_lshl_add_u32 v23, v23, 4, v25")
    e("v_lshl_add_u32 v24, v24, 4, v25")
    for q in range(8):
        e(f"v_add_u32 v{4+q}, {8*q*4096 - 1024*(q&3)}, v{24 if q & 1 else 23}")
    e("v_and_b32 v22, 15, v0")
    e("v_lshlrev_b32 v23, 2, v3")
    e("v_xor_b32 v22, v22, v23")
    e("v_xor_b32 v24, 2, v22")
    e("v_mul_u32_u24 v23, 896, v3")
    e("v_lshl_add_u32 v22, v22, 4, v23")
    e("v_lshl_add_u32 v24, v24, 4, v23")
    for q in range(8):
        e(f"v_add_u32 v{12+q}, {4*q*896 - 1024*(q&3)}, v{24 if (q>>1)&1 else 22}")
    e("s_lshl_b32 s52, s14, 18")
    e("s_lshl_b32 s49, s16, 11")
    e("s_add_u32 s52, s52, s49")
    e("s_lshl_b32 s53, s16, 10")
    e("s_lshl_b32 s50, s18, 5")
    e("s_add_u32 s53, s53, s50")
    e("s_mul_i32 s53, s53, 896")
    e("s_lshl_b32 s50, s90, 6")
    e("s_add_u32 s53, s53, s50")
    if ORD:
        e("s_mov_b32 s94, s52"); e("s_mov_b32 s95, s53")
        e("s_add_u32 s3, s14, s15")
        e("s_and_b32 s3, s3, 3")
        tb = ord_tables()
        e(f"s_mov_b32 s96, {tb[0] & 0xffffffff}"); e(f"s_mov_b32 s97, {tb[0] >> 32}")
        for ph in (1, 2, 3):
            e(f"s_cmp_eq_u32 s3, {ph}")
            e(f"s_cselect_b32 s96, {tb[ph] & 0xffffffff}, s96")
            e(f"s_cselect_b32 s97, {tb[ph] >> 32}, s97")
    e("s_lshl_b32 s50, s18, 13")
    e(f"s_add_u32 s51, s50, {SLOT*NSLOT}")
    e("s_mov_b32 s26, 0x800000"); e("s_mov_b32 s27, 0x00020000")
    e("s_mov_b32 s30, 1835008"); e("s_mov_b32 s31, 0x00020000")
    e("s_mov_b32 s46, 401408"); e("s_mov_b32 s47, 0x00020000")
    e("s_mov_b32 s3, 0")
    e("s_cmp_eq_u32 s18, 1")
    e("s_waitcnt lgkmcnt(0)")
    e("s_cselect_b32 s24, s8, s6")
    e("s_cselect_b32 s25, s9, s7")
    e("s_mov_b32 s28, s4"); e("s_mov_b32 s29, s5")
    e("s_mov_b32 s32, s42"); e("s_mov_b32 s33, s43")
    e("s_mov_b32 s44, s10"); e("s_mov_b32 s45, s11")
    e("s_getpc_b64 s[86:87]")
    e("s_add_u32 s86, s86, L_after0 - . + 4 - 4")
    e.lines.pop(); e.lines.pop()
    e("s_call_b64 s[86:87], L_issue")
    e("s_branch L_lcont")
    e.label("L_issue")
    if ORD:
        e("s_and_b32 s49, s96, 15")
        e("s_lshr_b64 s[96:97], s[96:97], 4")
        e("s_lshl_b32 s52, s49, 7")
        e("s_add_u32 s52, s52, s94")
        e(f"s_mul_i32 s53, s49, {64*896}")
        e("s_add_u32 s53, s53, s95")
    for part in range(2):
        for q in range(8):
            if (q & 3) == 0:
                e(f"s_add_u32 m0, s50, {part*XOFF + q*1024}")
                e("s_nop 0")
            off = f" offset:{1024*(q&3)}"
            if part == 0:
                e(f"buffer_load_dwordx4 v{4+q}, s[24:27], s52 offen{off}{' nt' if NTC else ''} lds")
            else:
                e(f"buffer_load_dwordx4 v{12+q}, s[28:31], s53 offen{off}{' nt' if NTX else ''} lds")
    e("s_add_u32 s52, s52, 128")
    e(f"s_add_u32 s53, s53, {64*896}")
    e(f"s_add_u32 s50, s50, {SLOT}")
    e(f"s_sub_u32 s49, s50, {SLOT*NSLOT}")
    e("s_cmp_ge_u32 s50, s51")
    e("s_cselect_b32 s50, s49, s50")
    e("s_setpc_b64 s[86:87]")
    e.label("L_lcont")
    e("s_call_b64 s[86:87], L_issue")
    e.stamp()
    e("s_lshl_b32 s12, s18, 3")
    e("v_add_u32 v27, s12, v20")
    for n in range(7):
        e(f"v_add_u32 v23, {16*n}, v27")
        e("v_bfe_u32 v24, v23, 1, 3")
        e("v_xor_b32 v24, v24, v21")
        if n < 6:
            e("v_bfe_u32 v25, v23, 2, 2")
            e("v_and_b32 v26, 3, v23")
            e("v_lshl_add_u32 v25, v25, 3, v26")
            e(f"v_add_u32 v23, {32*(n>>1) + 4*(n&1)}, v25")
        e("v_mul_u32_u24 v23, 896, v23")
        e(f"v_lshl_add_u32 v{32+n}, v24, 4, v23")
    e("s_mul_i32 s19, s15, 100352")
    e("s_lshl_b32 s12, s18, 10")
    rot2(e, 91)
    if PERST: e("s_mov_b32 s88, 0")
    if LOOK == 4:
        e("s_waitcnt vmcnt(16)")
        e("s_barrier"); e.pst()
        e("s_call_b64 s[86:87], L_issue")
        e("s_call_b64 s[86:87], L_issue")
        e("s_waitcnt vmcnt(32)")
        e("s_barrier"); e.pst()
        e("s_call_b64 s[86:87], L_issue")
        e("s_call_b64 s[86:87], L_issue")
        e("s_mov_b32 s3, 2")
    elif LOOK == 3:
        e("s_waitcnt vmcnt(16)")
        e("s_barrier"); e.pst()
        e("s_call_b64 s[86:87], L_issue")
        e("s_call_b64 s[86:87], L_issue")
        e("s_mov_b32 s3, 1")
    e.label("L_lloop")
    e(f"s_waitcnt vmcnt({16*(LOOK-1)})")
    e("s_barrier"); e.pst()
    e("s_call_b64 s[86:87], L_issue")
    e("s_add_u32 s3, s3, 1")
    e(f"s_cmp_lt_u32 s3, {16-LOOK}")
    e("s_cbranch_scc1 L_lloop")
    e.vm = [("s", st) for st in range(16-LOOK, 16) for _ in range(16)]
    def hstage(pos):
        e(f"s_add_u32 s92, s12, {HPOSN[pos]}")
        e("s_call_b64 s[86:87], L_hissue")
        e.vm += [("h", pos)]*7
    hn = 0
    for b in range(16-LOOK, 17):
        if b < 16: e.wait_vm({("s", b)})
        e("s_barrier"); e.pst()
        cnt = 0
        while hn < (11 - HLATE) and hbar(hn) <= b and (cnt < HPB or b == 16):
            hstage(hn); hn += 1; cnt += 1
    e.stamp()
    e("s_barrier"); e.pst()
    early = set(("h", p_) for p_ in range(11 - HLATE))
    for p_ in range(11 - HLATE, 11): hstage(p_)
    e.wait_vm(early)
    e.stamp()
    e("s_barrier"); e.pst()
    e.wait_vm_all()
    e("s_barrier"); e.pst()
    hstage(11); hstage(12); hstage(13)
    e.wait_vm_all()
    e("s_barrier"); e.pst()
    if not NOB20: e("s_barrier"); e.pst()
    e("s_barrier"); e.pst()
    e("s_branch L_end")
    e.label("L_hissue")
    e("s_sub_u32 s53, s91, 7")
    e("s_cmp_ge_u32 s91, 7")
    e("s_cselect_b32 s52, s53, s91")
    e("s_cselect_b32 s44, s36, s10")
    e("s_cselect_b32 s45, s37, s11")
    e("s_lshl_b32 s52, s52, 7")
    e("s_add_u32 s52, s52, s19")
    for n in range(7):
        e(f"s_add_u32 m0, s92, {n*2048}")
        e("s_nop 0")
        e(f"buffer_load_dwordx4 v{32+n}, s[44:47], s52 offen lds")
    e("s_add_u32 s91, s91, 1")
    e("s_cmp_ge_u32 s91, 14")
    e("s_cselect_b32 s91, 0, s91")
    e("s_setpc_b64 s[86:87]")
    nst_l = e.nst
    e.label("L_compute")
    e.vm = []; e.lg = []
    e.nst = 1
    if CPRIO: e(f"s_setprio {CPRIO}")
    if CPF:
        e("s_getpc_b64 s[26:27]")
        e.label("L_pcref")
        e(f"s_sub_u32 s26, s26, L_pcref - {NAME}")
        e("s_subb_u32 s27, s27, 0")
        e("s_lshl_b32 s12, s17, 13")
        e("v_lshlrev_b32 v45, 7, v0")
        e("v_add_u32 v45, s12, v45")
        e(f"v_min_u32 v45, L_codeend - {NAME} - 4, v45")
        e("s_cmp_ge_u32 s17, 2")
        e("s_cbranch_scc1 L_nocpf")
        e("global_load_dword v46, v45, s[26:27]")
        e.label("L_nocpf")
    e("s_lshr_b32 s18, s17, 1")
    e("s_and_b32 s19, s17, 1")
    e("s_lshl_b32 s24, s16, 1")
    e("s_add_u32 s24, s24, s18")
    e("s_lshl_b32 s24, s24, 7")
    e("s_lshl_b32 s12, s14, 2")
    e("s_add_u32 s24, s24, s12")
    e("s_mul_i32 s24, s24, 14")
    e("s_add_u32 s24, s24, s90")
    e("s_lshl_b32 s12, s19, 1")
    e("s_add_u32 s24, s24, s12")
    e("s_lshl_b32 s24, s24, 10")
    e("s_add_u32 s25, s24, 1024")
    e("s_lshl_b32 s12, s15, 1")
    e("s_add_u32 s12, s12, s19")
    e("s_cmp_eq_u32 s12, 4")
    e("s_cselect_b32 s24, s25, s24")
    e("s_cselect_b32 s31, 4, 0")
    e("s_sub_u32 s12, s12, 3")
    e("s_cmp_lt_u32 s12, 2")
    e("s_cselect_b32 s25, 0x7f000000, s25")
    e("s_cselect_b32 s89, 1, 0")
    for u in range(4):
        e(f"v_add_u32 v{40+u}, {u*14336}, v2")
    e("v_mov_b64 v[14:15], 0")
    e("v_mov_b32 v12, 0")
    e("v_mov_b32 v13, 1")
    e("s_mov_b32 s50, 256"); e("s_mov_b32 s51, 0x00020000")
    e("s_mov_b32 s22, 1835008"); e("s_mov_b32 s23, 0x00020000")
    e("s_lshl_b32 s52, s14, 7")
    e(f"s_add_u32 s52, s52, {0xF000000}")
    e("s_lshl_b32 s53, s16, 2")
    e("s_add_u32 s53, s53, s15")
    e("s_waitcnt lgkmcnt(0)")
    e("s_mov_b32 s32, s42"); e("s_mov_b32 s33, s43")
    e("s_mov_b32 s20, s38"); e("s_mov_b32 s21, s39")
    e("s_mov_b32 s48, s40"); e("s_mov_b32 s49, s41")
    e("s_or_b32 s12, s53, s17")
    e("s_cmp_lg_u32 s12, 0")
    e("s_cbranch_scc1 L_noclear")
    e("s_mov_b64 exec, 1")
    e("buffer_store_dwordx2 v[14:15], v12, s[32:35], s52 offen sc1")
    e("s_waitcnt vmcnt(0)")
    e("s_lshl_b32 s12, s14, 2")
    e("buffer_store_dword v13, v12, s[48:51], s12 offen sc1")
    e("s_mov_b64 exec, -1")
    e.label("L_noclear")
    e("s_add_u32 s53, s53, s52")
    AB = 16
    AC = 22
    e("v_and_b32 v5, 15, v0")
    e("v_lshrrev_b32 v12, 1, v5")
    e("v_xor_b32 v12, v12, v3")
    e("v_lshlrev_b32 v12, 4, v12")
    e("v_lshl_add_u32 v12, v5, 7, v12")
    e("s_lshl_b32 s12, s18, 13")
    e(f"v_add_u32 v{AB}, s12, v12")
    e(f"v_xor_b32 v{AB+1}, 64, v{AB}")
    e("v_bfe_u32 v5, v0, 2, 2")
    e("v_lshl_add_u32 v12, v3, 3, v5")
    e("v_lshlrev_b32 v12, 8, v12")
    e(f"v_add_u32 v12, {XOFF}, v12")
    e("v_and_b32 v13, 3, v0")
    e("v_lshrrev_b32 v14, 1, v13")
    e("v_xor_b32 v14, v14, v13")
    e("v_and_b32 v14, 1, v14")
    e("v_lshl_add_u32 v12, v14, 3, v12")
    e("v_and_b32 v14, 1, v3")
    e("v_lshlrev_b32 v14, 1, v14")
    e("v_xor_b32 v13, v13, v14")
    e("v_lshl_add_u32 v13, v5, 2, v13")
    e("s_lshl_b32 s12, s19, 3")
    e("s_xor_b32 s12, s12, s31")
    e("v_xor_b32 v13, s12, v13")
    for pp in range(2):
        e(f"v_xor_b32 v14, {4*pp}, v13")
        e(f"v_lshl_add_u32 v{AB+2+pp}, v14, 4, v12")
        e(f"v_xor_b32 v{AB+4+pp}, 8, v{AB+2+pp}")
    for t in range(6):
        e(f"v_mov_b32 v{AC+t}, v{AB+t}")
    ACC = 48; FR = 112
    def acc(T, u): return ACC + (T*4+u)*4
    def xf(buf, T): return FR + buf*32 + T*4
    def cf(buf, u): return FR + buf*32 + 16 + u*4
    for r in range(0, 64, 2):
        e(f"v_mov_b64 v[{ACC+r}:{ACC+r+1}], 0")
    e("v_mov_b32 v12, 0")
    e("v_mov_b32 v13, 1")
    e("s_mov_b32 vcc_lo, 0xffff0000")
    e("s_mov_b32 vcc_hi, 0x0000ffff")
    e("s_cmp_eq_u32 s18, 1")
    e("s_cselect_b32 s12, 0x80008000, 0")
    def reads(kk, NT=4):
        buf = kk
        out = []
        def xr(T):
            reg = AC + 2 + 2*(T & 1) + (T >> 1)
            for h in range(2):
                off = kk*8192 + h*1024
                d = xf(buf, T) + 2*h
                out.append((f"ds_read_b64_tr_b16 v[{d}:{d+1}], v{reg} offset:{off}", ("f", kk, "x", T)))
        def cr(u):
            d = cf(buf, u)
            out.append((f"ds_read_b128 v[{d}:{d+3}], v{AC+kk} offset:{u*2048}", ("f", kk, "c", u)))
        xr(0)
        for u in range(4): cr(u)
        for T in range(1, NT): xr(T)
        return out
    e("s_mov_b32 s28, 0")
    e("s_mov_b32 s29, 0")
    e.stamp()
    e("s_barrier")
    e.stamp()
    def mainloop(NT, lab):
        e.lg = []
        for s_, tag in reads(0, NT): e.lds(s_, tag)
        e.label(lab)
        for kk in range(2):
            nxt = reads(1 - kk, NT)
            ri = 0; mi = 0
            BARPOS = 3 if kk == 1 else 0
            nsl = NT*4
            for T in range(NT):
                for u in range(4):
                    e.wait_lg({("f", kk, "x", T), ("f", kk, "c", u)})
                    x = xf(kk, T); c = cf(kk, u); a = acc(T, u)
                    e(f"v_mfma_f32_16x16x32_bf16 v[{a}:{a+3}], v[{x}:{x+3}], v[{c}:{c+3}], v[{a}:{a+3}]")
                    if kk == 1 and mi < 3:
                        if mi == 0:
                            e(f"s_add_u32 s29, s29, {SLOT}")
                            e(f"s_cmp_ge_u32 s29, {SLOT*NSLOT}")
                            e("s_cselect_b32 s29, 0, s29")
                        for t in range(2*mi, 2*mi+2):
                            e(f"v_add_u32 v{AC+t}, s29, v{AB+t}")
                    if kk == 1 and mi == BARPOS:
                        e.wait_lg_all()
                        e("s_barrier")
                    if mi >= BARPOS and ri < len(nxt):
                        n_ = 2 if ((kk == 1 and mi < BARPOS + 2) or NT == 2) else 1
                        for _ in range(n_):
                            if ri < len(nxt):
                                e.lds(*nxt[ri]); ri += 1
                    mi += 1
            assert ri == len(nxt)
        e("s_add_u32 s28, s28, 1")
        e("s_cmp_lt_u32 s28, 16")
        e(f"s_cbranch_scc1 {lab}")
    if SKIPH:
        e("s_cmp_eq_u32 s89, 1")
        e("s_cbranch_scc0 L_full")
        mainloop(2, "L_mainh")
        e("s_branch L_mdone")
        e.label("L_full")
    mainloop(4, "L_main")
    e.label("L_mdone")
    e.stamp()
    e("s_lshl_b32 s3, s14, 2")
    e("s_load_dword s30, s[40:41], s3")
    e("s_nop 2")
    tmp = 192
    for u in range(4):
        for pp in range(2):
            t = tmp; tmp += 8
            a = acc(2*pp, u); b = acc(2*pp+1, u)
            e(f"v_cvt_pk_bf16_f32 v{t}, v{a}, v{a+1}")
            e(f"v_cvt_pk_bf16_f32 v{t+1}, v{a+2}, v{a+3}")
            e(f"v_cvt_pk_bf16_f32 v{t+2}, v{b}, v{b+1}")
            e(f"v_cvt_pk_bf16_f32 v{t+3}, v{b+2}, v{b+3}")
            for r in range(4): e(f"v_xor_b32 v{t+r}, s12, v{t+r}")
            e(f"v_cndmask_b32 v{t+4}, v{t}, v{t+2}, vcc")
            e(f"v_cndmask_b32 v{t+5}, v{t+1}, v{t+3}, vcc")
            e(f"v_cndmask_b32 v{t+6}, v{t+2}, v{t}, vcc")
            e(f"v_cndmask_b32 v{t+7}, v{t+3}, v{t+1}, vcc")
            e(f"buffer_store_dwordx4 v[{t+4}:{t+7}], v{40+u}, s[32:35], s{24+pp} offen sc1")
    e.stamp()
    A2 = 32; PF = 88; HF = 200
    def acc2(T, u): return A2 + (T*2+u)*4
    e("s_waitcnt lgkmcnt(0)")
    e.lg = []
    e("v_and_b32 v4, 15, v0")
    e("v_lshrrev_b32 v5, 1, v4")
    e("s_lshl_b32 s24, s19, 2")
    e("v_add_u32 v6, s24, v3")
    e("v_xor_b32 v5, v5, v6")
    e("v_lshlrev_b32 v5, 4, v5")
    e("v_lshl_add_u32 v5, v4, 7, v5")
    e("s_lshl_b32 s24, s14, 2")
    e("s_lshl_b32 s25, s16, 1")
    e("s_add_u32 s24, s24, s25")
    e("s_mul_i32 s24, s24, 14336")
    e("s_lshl_b32 s25, s19, 10")
    e("s_add_u32 s24, s24, s25")
    rot2(e, 26)
    e("s_add_u32 s26, s26, s18")
    for idx in range(7):
        e(f"s_add_u32 s25, s26, {2*idx}")
        e("s_sub_u32 s27, s25, 14")
        e("s_cmp_ge_u32 s25, 14")
        e("s_cselect_b32 s25, s27, s25")
        e("s_sub_u32 s27, s25, 7")
        e("s_cmp_ge_u32 s25, 7")
        e("s_cselect_b32 s25, s27, s25")
        e(f"s_cselect_b32 s27, {128*14336}, 0")
        e("s_lshl_b32 s25, s25, 11")
        e("s_add_u32 s25, s25, s27")
        e(f"s_add_u32 s{91+idx}, s25, s24")
    e("v_mov_b32 v24, v2")
    e("v_add_u32 v25, 14336, v2")
    e(f"v_add_u32 v26, {256*14336}, v2")
    e(f"v_add_u32 v27, {257*14336}, v2")
    e.vm = [("st",)]*8
    def pload(idx, track=True):
        for kp in range(2):
            for u in range(2):
                r = PF + (idx*4 + kp*2 + u)*4
                s_ = f"buffer_load_dwordx4 v[{r}:{r+3}], v{24+kp*2+u}, s[32:35], s{91+idx} offen sc1"
                if track: e.vmem(s_, ("p", idx))
                else: e(s_)
    e("s_cmp_eq_u32 s18, 1")
    for idx in range(7):
        e(f"s_mov_b32 s24, {HPOSN[2*idx]}")
        e(f"s_cselect_b32 s24, {HPOSN[1+2*idx]}, s24")
        e(f"v_add_u32 v{16+idx}, s24, v5")
    for r in range(0, 56, 2):
        e(f"v_mov_b64 v[{A2+r}:{A2+r+1}], 0")
    e.wait_vm_all()
    e.stamp()
    e("s_barrier")
    e("s_cmp_lg_u32 s17, 0")
    e("s_cbranch_scc1 L_nopoll")
    e("s_mov_b64 exec, 1")
    e("s_cmp_eq_u32 s30, 1")
    e("s_cbranch_scc0 L_clrslow")
    e.label("L_clrok")
    e("buffer_store_byte v13, v12, s[32:35], s53 offen sc1")
    e("s_mov_b32 s28, 0")
    e.label("L_poll")
    e("buffer_load_dwordx2 v[14:15], v12, s[32:35], s52 offen sc1")
    e("s_add_u32 s28, s28, 1")
    e("s_waitcnt vmcnt(0)")
    e("v_and_b32 v14, v14, v15")
    e("s_nop 0")
    e("v_readfirstlane_b32 s12, v14")
    e("s_cmp_eq_u32 s12, 0x01010101")
    e("s_cbranch_scc1 L_pollx")
    if SLEEP: e(f"s_sleep {SLEEP}")
    e("s_cmp_lt_u32 s28, 0x400000")
    e("s_cbranch_scc1 L_poll")
    e.label("L_pollx")
    e("s_mov_b64 exec, -1")
    e.label("L_nopoll")
    e("s_barrier")
    e.stamp()
    for idx in range(NPRE): pload(idx)
    def hreads(idx):
        out = []
        for T in range(7):
            d = HF + (idx & 1)*28 + T*4
            out.append((f"ds_read_b128 v[{d}:{d+3}], v{16+idx} offset:{T*2048}", ("h", idx, T)))
        return out
    if not PSUM:
        for s_, tag in hreads(0): e.lds(s_, tag)
        slow = []
        for idx in range(7):
            if idx == 1:
                e.wait_lg_all()
                e("s_barrier")
            if idx == 4:
                e("s_barrier")
            e.wait_vm({("p", idx)})
            if idx == 0: e.stamp()
            if idx + NPRE < 7: pload(idx + NPRE)
            nxt = hreads(idx+1) if idx < 6 else []
            ri = 0
            for T in range(7):
                e.wait_lg({("h", idx, T)})
                h = HF + (idx & 1)*28 + T*4
                for kp in range(2):
                    for u in range(2):
                        p = PF + (idx*4 + kp*2 + u)*4; a = acc2(T, u)
                        e(f"v_mfma_f32_16x16x32_bf16 v[{a}:{a+3}], v[{h}:{h+3}], v[{p}:{p+3}], v[{a}:{a+3}]")
                        if ri < len(nxt) and kp == 1 and u == 0:
                            e.lds(*nxt[ri]); ri += 1
            while ri < len(nxt):
                e.lds(*nxt[ri]); ri += 1
    else:
        for s_, tag in hreads(0): e.lds(s_, tag)
        e("s_mov_b32 s24, 0x05040100")
        e("s_mov_b32 s25, 0x07060302")
        e("v_mov_b32 v28, 0x3f803f80")
        def sums(idx):
            out = []
            for u in range(2):
                for r in range(4):
                    A = PF + (idx*4 + u)*4 + r; B = PF + (idx*4 + 2 + u)*4 + r
                    t0 = 4 + 2*(r & 1); t1 = t0 + 1
                    if PSUM == 1:
                        out.append(f"v_perm_b32 v{t0}, v{B}, v{A}, s24")
                        out.append(f"v_perm_b32 v{t1}, v{B}, v{A}, s25")
                        out.append(f"v_dot2_f32_bf16 v{t0}, v{t0}, v28, 0")
                        out.append(f"v_dot2_f32_bf16 v{t1}, v{t1}, v28, 0")
                        out.append("s_nop 2")
                        out.append(f"v_cvt_pk_bf16_f32 v{A}, v{t0}, v{t1}")
                    else:
                        t2 = 8 + 2*(r & 1); t3 = t2 + 1
                        out.append(f"v_lshlrev_b32 v{t0}, 16, v{A}")
                        out.append(f"v_and_b32 v{t1}, 0xffff0000, v{A}")
                        out.append(f"v_lshlrev_b32 v{t2}, 16, v{B}")
                        out.append(f"v_and_b32 v{t3}, 0xffff0000, v{B}")
                        out.append(f"v_add_f32 v{t0}, v{t0}, v{t2}")
                        out.append(f"v_add_f32 v{t1}, v{t1}, v{t3}")
                        out.append(f"v_cvt_pk_bf16_f32 v{A}, v{t0}, v{t1}")
            return out
        e.wait_vm({("p", 0)})
        e.stamp()
        if NPRE < 7: pload(NPRE)
        for s_ in sums(0): e(s_)
        for idx in range(7):
            if idx == 1:
                e.wait_lg_all()
                e("s_barrier")
            if idx == 4:
                e("s_barrier")
            va = []
            if idx < 6:
                e.wait_vm({("p", idx+1)})
                if idx + 1 + NPRE < 7: pload(idx + 1 + NPRE)
                va = sums(idx+1)
            else:
                e("s_nop 1")
            nxt = hreads(idx+1) if idx < 6 else []
            ri = 0; vi = 0
            per = -(-len(va) // 14)
            for T in range(7):
                e.wait_lg({("h", idx, T)})
                h = HF + (idx & 1)*28 + T*4
                for u in range(2):
                    p = PF + (idx*4 + u)*4; a_ = acc2(T, u)
                    e(f"v_mfma_f32_16x16x32_bf16 v[{a_}:{a_+3}], v[{h}:{h+3}], v[{p}:{p+3}], v[{a_}:{a_+3}]")
                    if ri < len(nxt) and u == 0:
                        e.lds(*nxt[ri]); ri += 1
                    for _ in range(per):
                        if vi < len(va):
                            e(va[vi]); vi += 1
            while ri < len(nxt):
                e.lds(*nxt[ri]); ri += 1
            while vi < len(va):
                e(va[vi]); vi += 1
            e("s_nop 1")
    e.vm = []; e.lg = []
    e.stamp()
    RS = 81920
    e("s_mul_i32 s48, s17, 14336")
    e(f"s_add_u32 s48, s48, {RS}")
    e("v_add_u32 v4, s48, v2")
    e("v_and_b32 v5, 15, v0")
    e("v_mul_u32_u24 v5, 896, v5")
    e("v_lshl_add_u32 v7, v3, 4, v5")
    e("v_lshl_add_u32 v8, v3, 3, v5")
    e("s_lshl_b32 s48, s14, 1")
    e("s_add_u32 s48, s48, s16")
    e("s_mul_i32 s48, s48, 28672")
    e("s_mul_i32 s49, s15, 224")
    e("s_add_u32 s48, s48, s49")
    for ii in range(2):
        e("s_lshl_b32 s24, s17, 1")
        if ii: e("s_add_u32 s24, s24, 1")
        e("s_sub_u32 s25, s24, 3")
        e("s_cmp_ge_u32 s24, 3")
        e("s_cselect_b32 s24, s25, s24")
        e("s_cselect_b32 s25, 1, 0")
        e("s_lshl_b32 s26, s24, 12")
        e("s_lshl_b32 s27, s25, 10")
        e("s_add_u32 s26, s26, s27")
        e(f"s_add_u32 s26, s26, {RS}")
        e(f"v_add_u32 v{10+ii}, s26, v2")
        e("s_mul_i32 s25, s25, 14336")
        e("s_lshl_b32 s24, s24, 6")
        e("s_add_u32 s24, s24, s25")
        e(f"s_add_u32 s{91+ii}, s24, s48")
    if not NOB20: e("s_barrier")
    for T in range(7):
        for u in range(2):
            a = acc2(T, u)
            e(f"ds_write_b128 v4, v[{a}:{a+3}] offset:{(T*2+u)*1024}")
    e("s_waitcnt lgkmcnt(0)")
    e("s_barrier")
    e("s_cmp_eq_u32 s17, 3")
    e("s_cbranch_scc1 L_fin3")
    def red(r, o):
        for q in range(4):
            e(f"v_add_f32 v{r+q}, v{r+q}, v{r+4+q}")
            e(f"v_add_f32 v{r+8+q}, v{r+8+q}, v{r+12+q}")
        for q in range(4):
            e(f"v_add_f32 v{r+q}, v{r+q}, v{r+8+q}")
        e(f"v_cvt_pk_bf16_f32 v{o}, v{r}, v{r+1}")
        e(f"v_cvt_pk_bf16_f32 v{o+1}, v{r+2}, v{r+3}")
    for ii in range(2):
        for ti in range(2):
            for ww in range(4):
                r = 88 + ii*32 + (ti*4+ww)*4
                e(f"ds_read_b128 v[{r}:{r+3}], v{10+ii} offset:{ww*14336 + ti*2048}")
    for ii in range(2):
        e(f"s_waitcnt lgkmcnt({8 if ii == 0 else 0})")
        for ti in range(2):
            red(88 + ii*32 + ti*16, 160 + ii*4 + 2*ti)
        e(f"buffer_store_dwordx4 v[{160+ii*4}:{163+ii*4}], v7, s[20:23], s{91+ii} offen {OUTF}")
    e("s_branch L_end")
    e.label("L_fin3")
    e(f"v_add_u32 v10, {RS + 12*1024}, v2")
    e("s_add_u32 s49, s48, 14336")
    for u in range(2):
        for ww in range(4):
            r = 88 + u*16 + ww*4
            e(f"ds_read_b128 v[{r}:{r+3}], v10 offset:{ww*14336 + u*1024}")
    e("s_waitcnt lgkmcnt(0)")
    for u in range(2):
        red(88 + u*16, 160 + 2*u)
        e(f"buffer_store_dwordx2 v[{160+2*u}:{161+2*u}], v8, s[20:23], s{48+u} offen offset:192 {OUTF}")
    e.label("L_end")
    if STAMP:
        e("s_waitcnt vmcnt(0)")
        e.nst = max(nst_l, e.nst)
        e.stamp()
        e.stamp_flush()
    e.label("L_done")
    e("s_endpgm")
    e.label("L_clrslow")
    e("s_sleep 8")
    e("buffer_load_dword v14, v12, s[48:51], s3 offen sc1")
    e("s_add_u32 s28, s28, 1")
    e("s_waitcnt vmcnt(0)")
    e("v_readfirstlane_b32 s30, v14")
    e("s_cmp_eq_u32 s30, 1")
    e("s_cbranch_scc1 L_clrok")
    e("s_cmp_lt_u32 s28, 0x400000")
    e("s_cbranch_scc1 L_clrslow")
    e("s_branch L_clrok")
    e.label("L_codeend")
    return e.text()

hdr = open("standalone__spectral_fnet__prompt.s.ref").read().split("; Override")[0]
out = hdr
out += f"; @launch grid=(256,1,1) block=(384,1,1) lds=163840\n"
out += '.amdgcn_target "amdgcn-amd-amdhsa--gfx950"\n.text\n'
out += gen()
out += f'''.section .rodata,"a"
.p2align 6
.amdhsa_kernel {NAME}
  .amdhsa_next_free_vgpr 256
  .amdhsa_next_free_sgpr 102
  .amdhsa_accum_offset 256
  .amdhsa_group_segment_fixed_size 0
  .amdhsa_kernarg_size 64
  .amdhsa_user_sgpr_count 2
  .amdhsa_user_sgpr_kernarg_segment_ptr 1
  .amdhsa_system_sgpr_workgroup_id_x 1
.end_amdhsa_kernel
'''
open(sys.argv[1], "w").write(out)
```

```python
import sys
def opt(name, default):
    for a in sys.argv:
        if a.startswith(f"--{name}="): return type(default)(a.split("=")[1])
    return default
STAMP = '--stamp' in sys.argv
MEMT = 's_memrealtime' if '--rt' in sys.argv else 's_memtime'
SLEEP = opt("sleep", 4)
NPRE = opt("npre", 2)
LOOK = opt("look", 4)
HPB = opt("hpb", 3)
CHKST = opt("chkst", 12)
PERST = opt("perst", 0)
HLATE = opt("hlate", 2)
LPRIO = opt("lprio", 0)
CPRIO = opt("cprio", 0)
OUTF = opt("outf", "")
SKIPH = opt("skiph", 1)
PSUM = opt("psum", 0)
CPF = opt("cpf", 0)
NOB20 = opt("nob20", 0)
ORD = opt("ord", 2)
MAPA = opt("mapa", 0)
M32 = opt("m32", 0)
NTC = opt("ntc", 0)
NTX = opt("ntx", 0)

class Em:
    def __init__(self):
        self.lines = []; self.vm = []; self.lg = []; self.nst = 0
    def __call__(self, s): self.lines.append("    " + s)
    def label(self, s): self.lines.append(s + ":")
    def vmem(self, s, tag): self(s); self.vm.append(tag)
    def lds(self, s, tag): self(s); self.lg.append(tag)
    def wait_vm(self, tags):
        idx = [i for i, t in enumerate(self.vm) if t in tags]
        if not idx: return
        n = min(len(self.vm) - 1 - max(idx), 63)
        self(f"s_waitcnt vmcnt({n})")
        self.vm = self.vm[len(self.vm) - n:] if n > 0 else []
    def wait_lg(self, tags):
        idx = [i for i, t in enumerate(self.lg) if t in tags]
        if not idx: return
        n = min(len(self.lg) - 1 - max(idx), 15)
        self(f"s_waitcnt lgkmcnt({n})")
        self.lg = self.lg[len(self.lg) - n:] if n > 0 else []
    def wait_lg_all(self): self("s_waitcnt lgkmcnt(0)"); self.lg = []
    def wait_vm_all(self): self("s_waitcnt vmcnt(0)"); self.vm = []
    def stamp(self):
        if not STAMP: return
        self.nst += 1
        r = 58 + 2*self.nst
        assert r < 84
        self(f"{MEMT} s[{r}:{r+1}]")
    def stamp_flush(self):
        if not STAMP: return
        self("s_memrealtime s[56:57]")
        self("s_waitcnt lgkmcnt(0)")
        self("s_lshl_b32 s50, s2, 3")
        self("s_add_u32 s50, s50, s17")
        self("s_lshl_b32 s50, s50, 8")
        self(f"s_add_u32 s50, s50, {0x1000000}")
        self("v_mov_b32 v1, 0")
        regs = [54, 56] + [58 + 2*i for i in range(1, self.nst+1)]
        for i, r in enumerate(regs):
            self(f"v_mov_b32 v3, s{r}")
            self(f"buffer_store_dword v3, v1, s[32:35], s50 offen offset:{4*i}")
            self("s_nop 1")
        if PERST:
            self("v_mbcnt_lo_u32_b32 v1, -1, 0")
            self("v_lshlrev_b32 v1, 2, v1")
            self("s_mov_b32 exec_lo, 0xffffff")
            self("s_mov_b32 exec_hi, 0")
            self(f"buffer_store_dword v60, v1, s[32:35], s50 offen offset:128")
    def pst(self):
        if not PERST: return
        self(f"{MEMT} s[84:85]")
        self("s_mov_b32 m0, s88")
        self("s_waitcnt lgkmcnt(0)")
        self("v_writelane_b32 v60, s84, m0")
        self("s_add_u32 s88, s88, 1")
    def text(self): return "\n".join(self.lines) + "\n"

SLOT = 32768; XOFF = 16384; NSLOT = 5
HST = 14336
HPOSN = [32768 + n*HST for n in range(9)] + [0, HST] + [32768, 32768 + HST, 32768 + 2*HST]
def hbar(pos):
    a = HPOSN[pos]; b = a + HST - 1
    need = 0
    for sl in range(a // SLOT, b // SLOT + 1):
        last = max(st for st in range(16) if st % NSLOT == sl)
        need = max(need, last + 1)
    return need
NAME = "standalone__spectral_fnet__prompt_kernel"

def ord_tables():
    tabs = []
    for ph in range(4):
        if ORD == 1:
            order = [(t + 4*ph) & 15 for t in range(16)]
        elif ORD == 2:
            lead_t = {0: ph}
            for r in range(1, 4): lead_t[4*(r-1) + 1 + ph] = 4*r + ph
            fq = [4*r + ((ph + d) & 3) for r in range(4) for d in (1, 2, 3)]
            order = []
            for t in range(16):
                order.append(lead_t[t] if t in lead_t else fq.pop(0))
        elif ORD >= 10:
            LT = {
              10: lambda ph: [0, 1, 2+ph, 6+ph],
              11: lambda ph: [0, 1+(ph>>1), 4+ph, 8+ph],
              12: lambda ph: [0, 1+ph, 4+ph, 7+ph],
              13: lambda ph: [0, 2+ph, 6+ph, 10+ph],
              14: lambda ph: [0, 1+ph, 5+ph, 8+ph],
              15: lambda ph: [0, 1, 3+(ph>>1)*2, 6+(ph>>1)*2+(ph&1)],
            }[ORD](ph)
            lead_t = {t_: 4*r + ph for r, t_ in enumerate(LT)}
            fq = [4*r + ((ph + d) & 3) for r in range(4) for d in (1, 2, 3)]
            order = []
            for t in range(16):
                order.append(lead_t[t] if t in lead_t else fq.pop(0))
        elif ORD == 3:
            order = [4*r + ((ph + d) & 3) for r in range(4) for d in range(4)]
        assert sorted(order) == list(range(16))
        v = 0
        for t, s_ in enumerate(order): v |= s_ << (4*t)
        tabs.append(v)
    return tabs
def rot2(e, dst):
    e(f"s_mul_i32 s{dst}, s15, 7")
    e(f"s_add_u32 s{dst}, s{dst}, 1")
    e(f"s_lshr_b32 s{dst}, s{dst}, 1")
    e(f"s_and_b32 s98, s14, 7")
    e(f"s_mul_i32 s98, s98, 7")
    e(f"s_lshr_b32 s98, s98, 2")
    e(f"s_add_u32 s{dst}, s{dst}, s98")
    e(f"s_sub_u32 s98, s{dst}, 14")
    e(f"s_cmp_ge_u32 s{dst}, 14")
    e(f"s_cselect_b32 s{dst}, s98, s{dst}")

def gen():
    e = Em()
    e.lines.append(f".globl {NAME}\n.p2align 8\n.type {NAME},@function\n{NAME}:")
    e("s_cmp_ge_u32 s2, 256")
    e("s_cbranch_scc1 L_done")
    e("s_load_dwordx8 s[4:11], s[0:1], 0")
    e("s_load_dwordx8 s[36:43], s[0:1], 32")
    if STAMP: e("s_memrealtime s[54:55]")
    e.stamp()
    e("v_lshrrev_b32 v1, 6, v0")
    e("v_and_b32 v0, 63, v0")
    e("v_readfirstlane_b32 s17, v1")
    e("s_lshr_b32 s13, s2, 3")
    e("s_and_b32 s15, s13, 3")
    e("s_and_b32 s16, s2, 1")
    e("s_bfe_u32 s14, s2, 0x20001")
    e("s_lshl_b32 s14, s14, 3")
    e("s_lshr_b32 s12, s13, 2")
    e("s_add_u32 s14, s14, s12")
    if MAPA:
        e("s_and_b32 s14, s2, 7")
        e("s_lshl_b32 s14, s14, 2")
        e("s_lshr_b32 s12, s13, 3")
        e("s_add_u32 s14, s14, s12")
        e("s_bfe_u32 s16, s13, 0x10002")
    e("s_lshl_b32 s90, s15, 2")
    e("s_and_b32 s12, s15, 2")
    e("s_sub_u32 s90, s90, s12")
    e("v_lshrrev_b32 v3, 4, v0")
    e("v_lshlrev_b32 v2, 4, v0")
    e("s_mov_b32 s34, 0x10000000"); e("s_mov_b32 s35, 0x00020000")
    e("s_cmp_lt_u32 s17, 4")
    e("s_cbranch_scc1 L_compute")
    if LPRIO: e(f"s_setprio {LPRIO}")
    e("s_sub_u32 s18, s17, 4")
    e("v_lshrrev_b32 v20, 3, v0")
    e("v_and_b32 v21, 7, v0")
    e("v_lshrrev_b32 v22, 1, v20")
    e("v_xor_b32 v23, v22, v21")
    e("v_xor_b32 v24, 4, v23")
    e("v_lshlrev_b32 v25, 12, v20")
    e("v_lshl_add_u32 v23, v23, 4, v25")
    e("v_lshl_add_u32 v24, v24, 4, v25")
    for q in range(8):
        e(f"v_add_u32 v{4+q}, {8*q*4096 - 1024*(q&3)}, v{24 if q & 1 else 23}")
    e("v_and_b32 v22, 15, v0")
    e("v_lshlrev_b32 v23, 2, v3")
    e("v_xor_b32 v22, v22, v23")
    e("v_xor_b32 v24, 2, v22")
    e("v_mul_u32_u24 v23, 896, v3")
    e("v_lshl_add_u32 v22, v22, 4, v23")
    e("v_lshl_add_u32 v24, v24, 4, v23")
    for q in range(8):
        e(f"v_add_u32 v{12+q}, {4*q*896 - 1024*(q&3)}, v{24 if (q>>1)&1 else 22}")
    e("s_lshl_b32 s52, s14, 18")
    e("s_lshl_b32 s49, s16, 11")
    e("s_add_u32 s52, s52, s49")
    e("s_lshl_b32 s53, s16, 10")
    e("s_lshl_b32 s50, s18, 5")
    e("s_add_u32 s53, s53, s50")
    e("s_mul_i32 s53, s53, 896")
    e("s_lshl_b32 s50, s90, 6")
    e("s_add_u32 s53, s53, s50")
    if ORD:
        e("s_mov_b32 s94, s52"); e("s_mov_b32 s95, s53")
        e("s_add_u32 s3, s14, s15")
        e("s_and_b32 s3, s3, 3")
        tb = ord_tables()
        e(f"s_mov_b32 s96, {tb[0] & 0xffffffff}"); e(f"s_mov_b32 s97, {tb[0] >> 32}")
        for ph in (1, 2, 3):
            e(f"s_cmp_eq_u32 s3, {ph}")
            e(f"s_cselect_b32 s96, {tb[ph] & 0xffffffff}, s96")
            e(f"s_cselect_b32 s97, {tb[ph] >> 32}, s97")
    e("s_lshl_b32 s50, s18, 13")
    e(f"s_add_u32 s51, s50, {SLOT*NSLOT}")
    e("s_mov_b32 s26, 0x800000"); e("s_mov_b32 s27, 0x00020000")
    e("s_mov_b32 s30, 1835008"); e("s_mov_b32 s31, 0x00020000")
    e("s_mov_b32 s46, 401408"); e("s_mov_b32 s47, 0x00020000")
    e("s_mov_b32 s3, 0")
    e("s_cmp_eq_u32 s18, 1")
    e("s_waitcnt lgkmcnt(0)")
    e("s_cselect_b32 s24, s8, s6")
    e("s_cselect_b32 s25, s9, s7")
    e("s_mov_b32 s28, s4"); e("s_mov_b32 s29, s5")
    e("s_mov_b32 s32, s42"); e("s_mov_b32 s33, s43")
    e("s_mov_b32 s44, s10"); e("s_mov_b32 s45, s11")
    e("s_getpc_b64 s[86:87]")
    e("s_add_u32 s86, s86, L_after0 - . + 4 - 4")
    e.lines.pop(); e.lines.pop()
    e("s_call_b64 s[86:87], L_issue")
    e("s_branch L_lcont")
    e.label("L_issue")
    if ORD:
        e("s_and_b32 s49, s96, 15")
        e("s_lshr_b64 s[96:97], s[96:97], 4")
        e("s_lshl_b32 s52, s49, 7")
        e("s_add_u32 s52, s52, s94")
        e(f"s_mul_i32 s53, s49, {64*896}")
        e("s_add_u32 s53, s53, s95")
    for part in range(2):
        for q in range(8):
            if (q & 3) == 0:
                e(f"s_add_u32 m0, s50, {part*XOFF + q*1024}")
                e("s_nop 0")
            off = f" offset:{1024*(q&3)}"
            if part == 0:
                e(f"buffer_load_dwordx4 v{4+q}, s[24:27], s52 offen{off}{' nt' if NTC else ''} lds")
            else:
                e(f"buffer_load_dwordx4 v{12+q}, s[28:31], s53 offen{off}{' nt' if NTX else ''} lds")
    e("s_add_u32 s52, s52, 128")
    e(f"s_add_u32 s53, s53, {64*896}")
    e(f"s_add_u32 s50, s50, {SLOT}")
    e(f"s_sub_u32 s49, s50, {SLOT*NSLOT}")
    e("s_cmp_ge_u32 s50, s51")
    e("s_cselect_b32 s50, s49, s50")
    e("s_setpc_b64 s[86:87]")
    e.label("L_lcont")
    e("s_call_b64 s[86:87], L_issue")
    e.stamp()
    e("s_lshl_b32 s12, s18, 3")
    e("v_add_u32 v27, s12, v20")
    for n in range(7):
        e(f"v_add_u32 v23, {16*n}, v27")
        e("v_bfe_u32 v24, v23, 1, 3")
        e("v_xor_b32 v24, v24, v21")
        if n < 6:
            e("v_bfe_u32 v25, v23, 2, 2")
            e("v_and_b32 v26, 3, v23")
            e("v_lshl_add_u32 v25, v25, 3, v26")
            e(f"v_add_u32 v23, {32*(n>>1) + 4*(n&1)}, v25")
        e("v_mul_u32_u24 v23, 896, v23")
        e(f"v_lshl_add_u32 v{32+n}, v24, 4, v23")
    e("s_mul_i32 s19, s15, 100352")
    e("s_lshl_b32 s12, s18, 10")
    rot2(e, 91)
    if PERST: e("s_mov_b32 s88, 0")
    if LOOK == 4:
        e("s_waitcnt vmcnt(16)")
        e("s_barrier"); e.pst()
        e("s_call_b64 s[86:87], L_issue")
        e("s_call_b64 s[86:87], L_issue")
        e("s_waitcnt vmcnt(32)")
        e("s_barrier"); e.pst()
        e("s_call_b64 s[86:87], L_issue")
        e("s_call_b64 s[86:87], L_issue")
        e("s_mov_b32 s3, 2")
    elif LOOK == 3:
        e("s_waitcnt vmcnt(16)")
        e("s_barrier"); e.pst()
        e("s_call_b64 s[86:87], L_issue")
        e("s_call_b64 s[86:87], L_issue")
        e("s_mov_b32 s3, 1")
    e.label("L_lloop")
    e(f"s_waitcnt vmcnt({16*(LOOK-1)})")
    e("s_barrier"); e.pst()
    e("s_call_b64 s[86:87], L_issue")
    e("s_add_u32 s3, s3, 1")
    e(f"s_cmp_lt_u32 s3, {16-LOOK}")
    e("s_cbranch_scc1 L_lloop")
    e.vm = [("s", st) for st in range(16-LOOK, 16) for _ in range(16)]
    def hstage(pos):
        e(f"s_add_u32 s92, s12, {HPOSN[pos]}")
        e("s_call_b64 s[86:87], L_hissue")
        e.vm += [("h", pos)]*7
    hn = 0
    for b in range(16-LOOK, 17):
        if b < 16: e.wait_vm({("s", b)})
        e("s_barrier"); e.pst()
        cnt = 0
        while hn < (11 - HLATE) and hbar(hn) <= b and (cnt < HPB or b == 16):
            hstage(hn); hn += 1; cnt += 1
    e.stamp()
    e("s_barrier"); e.pst()
    early = set(("h", p_) for p_ in range(11 - HLATE))
    for p_ in range(11 - HLATE, 11): hstage(p_)
    e.wait_vm(early)
    e.stamp()
    e("s_barrier"); e.pst()
    e.wait_vm_all()
    e("s_barrier"); e.pst()
    hstage(11); hstage(12); hstage(13)
    e.wait_vm_all()
    e("s_barrier"); e.pst()
    if not NOB20: e("s_barrier"); e.pst()
    e("s_barrier"); e.pst()
    e("s_branch L_end")
    e.label("L_hissue")
    e("s_sub_u32 s53, s91, 7")
    e("s_cmp_ge_u32 s91, 7")
    e("s_cselect_b32 s52, s53, s91")
    e("s_cselect_b32 s44, s36, s10")
    e("s_cselect_b32 s45, s37, s11")
    e("s_lshl_b32 s52, s52, 7")
    e("s_add_u32 s52, s52, s19")
    for n in range(7):
        e(f"s_add_u32 m0, s92, {n*2048}")
        e("s_nop 0")
        e(f"buffer_load_dwordx4 v{32+n}, s[44:47], s52 offen lds")
    e("s_add_u32 s91, s91, 1")
    e("s_cmp_ge_u32 s91, 14")
    e("s_cselect_b32 s91, 0, s91")
    e("s_setpc_b64 s[86:87]")
    nst_l = e.nst
    e.label("L_compute")
    e.vm = []; e.lg = []
    e.nst = 1
    if CPRIO: e(f"s_setprio {CPRIO}")
    if CPF:
        e("s_getpc_b64 s[26:27]")
        e.label("L_pcref")
        e(f"s_sub_u32 s26, s26, L_pcref - {NAME}")
        e("s_subb_u32 s27, s27, 0")
        e("s_lshl_b32 s12, s17, 13")
        e("v_lshlrev_b32 v45, 7, v0")
        e("v_add_u32 v45, s12, v45")
        e(f"v_min_u32 v45, L_codeend - {NAME} - 4, v45")
        e("s_cmp_ge_u32 s17, 2")
        e("s_cbranch_scc1 L_nocpf")
        if CPF == 2:
            e("s_cmp_ge_u32 s13, 1")
            e("s_cbranch_scc1 L_nocpf")
        e("global_load_dword v46, v45, s[26:27]")
        e.label("L_nocpf")
    e("s_lshr_b32 s18, s17, 1")
    e("s_and_b32 s19, s17, 1")
    e("s_lshl_b32 s24, s16, 1")
    e("s_add_u32 s24, s24, s18")
    e("s_lshl_b32 s24, s24, 7")
    e("s_lshl_b32 s12, s14, 2")
    e("s_add_u32 s24, s24, s12")
    e("s_mul_i32 s24, s24, 14")
    e("s_add_u32 s24, s24, s90")
    e("s_lshl_b32 s12, s19, 1")
    e("s_add_u32 s24, s24, s12")
    e("s_lshl_b32 s24, s24, 10")
    e("s_add_u32 s25, s24, 1024")
    e("s_lshl_b32 s12, s15, 1")
    e("s_add_u32 s12, s12, s19")
    e("s_cmp_eq_u32 s12, 4")
    e("s_cselect_b32 s24, s25, s24")
    e("s_cselect_b32 s31, 4, 0")
    e("s_sub_u32 s12, s12, 3")
    e("s_cmp_lt_u32 s12, 2")
    e("s_cselect_b32 s25, 0x7f000000, s25")
    e("s_cselect_b32 s89, 1, 0")
    for u in range(4):
        e(f"v_add_u32 v{40+u}, {u*14336}, v2")
    e("v_mov_b64 v[14:15], 0")
    e("v_mov_b32 v12, 0")
    e("v_mov_b32 v13, 1")
    e("s_mov_b32 s50, 256"); e("s_mov_b32 s51, 0x00020000")
    e("s_mov_b32 s22, 1835008"); e("s_mov_b32 s23, 0x00020000")
    e("s_lshl_b32 s52, s14, 7")
    e(f"s_add_u32 s52, s52, {0xF000000}")
    e("s_lshl_b32 s53, s16, 2")
    e("s_add_u32 s53, s53, s15")
    e("s_waitcnt lgkmcnt(0)")
    e("s_mov_b32 s32, s42"); e("s_mov_b32 s33, s43")
    e("s_mov_b32 s20, s38"); e("s_mov_b32 s21, s39")
    e("s_mov_b32 s48, s40"); e("s_mov_b32 s49, s41")
    e("s_or_b32 s12, s53, s17")
    e("s_cmp_lg_u32 s12, 0")
    e("s_cbranch_scc1 L_noclear")
    e("s_mov_b64 exec, 1")
    e("buffer_store_dwordx2 v[14:15], v12, s[32:35], s52 offen sc1")
    e("s_waitcnt vmcnt(0)")
    e("s_lshl_b32 s12, s14, 2")
    e("buffer_store_dword v13, v12, s[48:51], s12 offen sc1")
    e("s_mov_b64 exec, -1")
    e.label("L_noclear")
    e("s_add_u32 s53, s53, s52")
    AB = 16
    AC = 22
    e("v_and_b32 v5, 15, v0")
    e("v_lshrrev_b32 v12, 1, v5")
    e("v_xor_b32 v12, v12, v3")
    e("v_lshlrev_b32 v12, 4, v12")
    e("v_lshl_add_u32 v12, v5, 7, v12")
    e("s_lshl_b32 s12, s18, 13")
    e(f"v_add_u32 v{AB}, s12, v12")
    e(f"v_xor_b32 v{AB+1}, 64, v{AB}")
    e("v_bfe_u32 v5, v0, 2, 2")
    e("v_lshl_add_u32 v12, v3, 3, v5")
    e("v_lshlrev_b32 v12, 8, v12")
    e(f"v_add_u32 v12, {XOFF}, v12")
    e("v_and_b32 v13, 3, v0")
    e("v_lshrrev_b32 v14, 1, v13")
    e("v_xor_b32 v14, v14, v13")
    e("v_and_b32 v14, 1, v14")
    e("v_lshl_add_u32 v12, v14, 3, v12")
    e("v_and_b32 v14, 1, v3")
    e("v_lshlrev_b32 v14, 1, v14")
    e("v_xor_b32 v13, v13, v14")
    e("v_lshl_add_u32 v13, v5, 2, v13")
    e("s_lshl_b32 s12, s19, 3")
    e("s_xor_b32 s12, s12, s31")
    e("v_xor_b32 v13, s12, v13")
    for pp in range(2):
        e(f"v_xor_b32 v14, {4*pp}, v13")
        e(f"v_lshl_add_u32 v{AB+2+pp}, v14, 4, v12")
        e(f"v_xor_b32 v{AB+4+pp}, 8, v{AB+2+pp}")
    for t in range(6):
        e(f"v_mov_b32 v{AC+t}, v{AB+t}")
    ACC = 48; FR = 112
    def acc(T, u): return ACC + (T*4+u)*4
    def xf(buf, T): return FR + buf*32 + T*4
    def cf(buf, u): return FR + buf*32 + 16 + u*4
    for r in range(0, 64, 2):
        e(f"v_mov_b64 v[{ACC+r}:{ACC+r+1}], 0")
    e("v_mov_b32 v12, 0")
    e("v_mov_b32 v13, 1")
    e("s_mov_b32 vcc_lo, 0xffff0000")
    e("s_mov_b32 vcc_hi, 0x0000ffff")
    e("s_cmp_eq_u32 s18, 1")
    e("s_cselect_b32 s12, 0x80008000, 0")
    def reads(kk, NT=4):
        buf = kk
        out = []
        def xr(T):
            reg = AC + 2 + 2*(T & 1) + (T >> 1)
            for h in range(2):
                off = kk*8192 + h*1024
                d = xf(buf, T) + 2*h
                out.append((f"ds_read_b64_tr_b16 v[{d}:{d+1}], v{reg} offset:{off}", ("f", kk, "x", T)))
        def cr(u):
            d = cf(buf, u)
            out.append((f"ds_read_b128 v[{d}:{d+3}], v{AC+kk} offset:{u*2048}", ("f", kk, "c", u)))
        xr(0)
        for u in range(4): cr(u)
        for T in range(1, NT): xr(T)
        return out
    e("s_mov_b32 s28, 0")
    e("s_mov_b32 s29, 0")
    e.stamp()
    e("s_barrier")
    e.stamp()
    def mainloop(NT, lab):
        e.lg = []
        for s_, tag in reads(0, NT): e.lds(s_, tag)
        e.label(lab)
        for kk in range(2):
            nxt = reads(1 - kk, NT)
            ri = 0; mi = 0
            BARPOS = 3 if kk == 1 else 0
            nsl = NT*4
            for T in range(NT):
                for u in range(4):
                    e.wait_lg({("f", kk, "x", T), ("f", kk, "c", u)})
                    x = xf(kk, T); c = cf(kk, u); a = acc(T, u)
                    if not M32:
                        e(f"v_mfma_f32_16x16x32_bf16 v[{a}:{a+3}], v[{x}:{x+3}], v[{c}:{c+3}], v[{a}:{a+3}]")
                    elif u & 1:
                        a32 = ACC + ((T >> 1)*2 + (u >> 1))*16
                        e(f"v_mfma_f32_32x32x16_bf16 v[{a32}:{a32+15}], v[{x}:{x+3}], v[{c}:{c+3}], v[{a32}:{a32+15}]")
                    if kk == 1 and mi < 3:
                        if mi == 0:
                            e(f"s_add_u32 s29, s29, {SLOT}")
                            e(f"s_cmp_ge_u32 s29, {SLOT*NSLOT}")
                            e("s_cselect_b32 s29, 0, s29")
                        for t in range(2*mi, 2*mi+2):
                            e(f"v_add_u32 v{AC+t}, s29, v{AB+t}")
                    if kk == 1 and mi == BARPOS:
                        e.wait_lg_all()
                        e("s_barrier")
                    if mi >= BARPOS and ri < len(nxt):
                        n_ = 2 if ((kk == 1 and mi < BARPOS + 2) or NT == 2) else 1
                        for _ in range(n_):
                            if ri < len(nxt):
                                e.lds(*nxt[ri]); ri += 1
                    mi += 1
            assert ri == len(nxt)
        e("s_add_u32 s28, s28, 1")
        e("s_cmp_lt_u32 s28, 16")
        e(f"s_cbranch_scc1 {lab}")
    if SKIPH:
        e("s_cmp_eq_u32 s89, 1")
        e("s_cbranch_scc0 L_full")
        mainloop(2, "L_mainh")
        e("s_branch L_mdone")
        e.label("L_full")
    mainloop(4, "L_main")
    e.label("L_mdone")
    e.stamp()
    e("s_lshl_b32 s3, s14, 2")
    e("s_load_dword s30, s[40:41], s3")
    e("s_nop 2")
    tmp = 192
    for u in range(4):
        for pp in range(2):
            t = tmp; tmp += 8
            a = acc(2*pp, u); b = acc(2*pp+1, u)
            e(f"v_cvt_pk_bf16_f32 v{t}, v{a}, v{a+1}")
            e(f"v_cvt_pk_bf16_f32 v{t+1}, v{a+2}, v{a+3}")
            e(f"v_cvt_pk_bf16_f32 v{t+2}, v{b}, v{b+1}")
            e(f"v_cvt_pk_bf16_f32 v{t+3}, v{b+2}, v{b+3}")
            for r in range(4): e(f"v_xor_b32 v{t+r}, s12, v{t+r}")
            e(f"v_cndmask_b32 v{t+4}, v{t}, v{t+2}, vcc")
            e(f"v_cndmask_b32 v{t+5}, v{t+1}, v{t+3}, vcc")
            e(f"v_cndmask_b32 v{t+6}, v{t+2}, v{t}, vcc")
            e(f"v_cndmask_b32 v{t+7}, v{t+3}, v{t+1}, vcc")
            e(f"buffer_store_dwordx4 v[{t+4}:{t+7}], v{40+u}, s[32:35], s{24+pp} offen sc1")
    e.stamp()
    A2 = 32; PF = 88; HF = 200
    def acc2(T, u): return A2 + (T*2+u)*4
    e("s_waitcnt lgkmcnt(0)")
    e.lg = []
    e("v_and_b32 v4, 15, v0")
    e("v_lshrrev_b32 v5, 1, v4")
    e("s_lshl_b32 s24, s19, 2")
    e("v_add_u32 v6, s24, v3")
    e("v_xor_b32 v5, v5, v6")
    e("v_lshlrev_b32 v5, 4, v5")
    e("v_lshl_add_u32 v5, v4, 7, v5")
    e("s_lshl_b32 s24, s14, 2")
    e("s_lshl_b32 s25, s16, 1")
    e("s_add_u32 s24, s24, s25")
    e("s_mul_i32 s24, s24, 14336")
    e("s_lshl_b32 s25, s19, 10")
    e("s_add_u32 s24, s24, s25")
    rot2(e, 26)
    e("s_add_u32 s26, s26, s18")
    for idx in range(7):
        e(f"s_add_u32 s25, s26, {2*idx}")
        e("s_sub_u32 s27, s25, 14")
        e("s_cmp_ge_u32 s25, 14")
        e("s_cselect_b32 s25, s27, s25")
        e("s_sub_u32 s27, s25, 7")
        e("s_cmp_ge_u32 s25, 7")
        e("s_cselect_b32 s25, s27, s25")
        e(f"s_cselect_b32 s27, {128*14336}, 0")
        e("s_lshl_b32 s25, s25, 11")
        e("s_add_u32 s25, s25, s27")
        e(f"s_add_u32 s{91+idx}, s25, s24")
    e("v_mov_b32 v24, v2")
    e("v_add_u32 v25, 14336, v2")
    e(f"v_add_u32 v26, {256*14336}, v2")
    e(f"v_add_u32 v27, {257*14336}, v2")
    e.vm = [("st",)]*8
    def pload(idx, track=True):
        for kp in range(2):
            for u in range(2):
                r = PF + (idx*4 + kp*2 + u)*4
                s_ = f"buffer_load_dwordx4 v[{r}:{r+3}], v{24+kp*2+u}, s[32:35], s{91+idx} offen sc1"
                if track: e.vmem(s_, ("p", idx))
                else: e(s_)
    e("s_cmp_eq_u32 s18, 1")
    for idx in range(7):
        e(f"s_mov_b32 s24, {HPOSN[2*idx]}")
        e(f"s_cselect_b32 s24, {HPOSN[1+2*idx]}, s24")
        e(f"v_add_u32 v{16+idx}, s24, v5")
    for r in range(0, 56, 2):
        e(f"v_mov_b64 v[{A2+r}:{A2+r+1}], 0")
    e.wait_vm_all()
    e.stamp()
    e("s_barrier")
    e("s_cmp_lg_u32 s17, 0")
    e("s_cbranch_scc1 L_nopoll")
    e("s_mov_b64 exec, 1")
    e("s_cmp_eq_u32 s30, 1")
    e("s_cbranch_scc0 L_clrslow")
    e.label("L_clrok")
    e("buffer_store_byte v13, v12, s[32:35], s53 offen sc1")
    e("s_mov_b32 s28, 0")
    e.label("L_poll")
    e("buffer_load_dwordx2 v[14:15], v12, s[32:35], s52 offen sc1")
    e("s_add_u32 s28, s28, 1")
    e("s_waitcnt vmcnt(0)")
    e("v_and_b32 v14, v14, v15")
    e("s_nop 0")
    e("v_readfirstlane_b32 s12, v14")
    e("s_cmp_eq_u32 s12, 0x01010101")
    e("s_cbranch_scc1 L_pollx")
    if SLEEP: e(f"s_sleep {SLEEP}")
    e("s_cmp_lt_u32 s28, 0x400000")
    e("s_cbranch_scc1 L_poll")
    e.label("L_pollx")
    e("s_mov_b64 exec, -1")
    e.label("L_nopoll")
    e("s_barrier")
    e.stamp()
    for idx in range(NPRE): pload(idx)
    def hreads(idx):
        out = []
        for T in range(7):
            d = HF + (idx & 1)*28 + T*4
            out.append((f"ds_read_b128 v[{d}:{d+3}], v{16+idx} offset:{T*2048}", ("h", idx, T)))
        return out
    if not PSUM:
        for s_, tag in hreads(0): e.lds(s_, tag)
        slow = []
        for idx in range(7):
            if idx == 1:
                e.wait_lg_all()
                e("s_barrier")
            if idx == 4:
                e("s_barrier")
            e.wait_vm({("p", idx)})
            if idx == 0: e.stamp()
            if idx + NPRE < 7: pload(idx + NPRE)
            nxt = hreads(idx+1) if idx < 6 else []
            ri = 0
            for T in range(7):
                e.wait_lg({("h", idx, T)})
                h = HF + (idx & 1)*28 + T*4
                for kp in range(2):
                    for u in range(2):
                        p = PF + (idx*4 + kp*2 + u)*4; a = acc2(T, u)
                        e(f"v_mfma_f32_16x16x32_bf16 v[{a}:{a+3}], v[{h}:{h+3}], v[{p}:{p+3}], v[{a}:{a+3}]")
                        if ri < len(nxt) and kp == 1 and u == 0:
                            e.lds(*nxt[ri]); ri += 1
            while ri < len(nxt):
                e.lds(*nxt[ri]); ri += 1
    else:
        for s_, tag in hreads(0): e.lds(s_, tag)
        e("s_mov_b32 s24, 0x05040100")
        e("s_mov_b32 s25, 0x07060302")
        e("v_mov_b32 v28, 0x3f803f80")
        def sums(idx):
            out = []
            for u in range(2):
                for r in range(4):
                    A = PF + (idx*4 + u)*4 + r; B = PF + (idx*4 + 2 + u)*4 + r
                    t0 = 4 + 2*(r & 1); t1 = t0 + 1
                    if PSUM == 1:
                        out.append(f"v_perm_b32 v{t0}, v{B}, v{A}, s24")
                        out.append(f"v_perm_b32 v{t1}, v{B}, v{A}, s25")
                        out.append(f"v_dot2_f32_bf16 v{t0}, v{t0}, v28, 0")
                        out.append(f"v_dot2_f32_bf16 v{t1}, v{t1}, v28, 0")
                        out.append("s_nop 2")
                        out.append(f"v_cvt_pk_bf16_f32 v{A}, v{t0}, v{t1}")
                    else:
                        t2 = 8 + 2*(r & 1); t3 = t2 + 1
                        out.append(f"v_lshlrev_b32 v{t0}, 16, v{A}")
                        out.append(f"v_and_b32 v{t1}, 0xffff0000, v{A}")
                        out.append(f"v_lshlrev_b32 v{t2}, 16, v{B}")
                        out.append(f"v_and_b32 v{t3}, 0xffff0000, v{B}")
                        out.append(f"v_add_f32 v{t0}, v{t0}, v{t2}")
                        out.append(f"v_add_f32 v{t1}, v{t1}, v{t3}")
                        out.append(f"v_cvt_pk_bf16_f32 v{A}, v{t0}, v{t1}")
            return out
        e.wait_vm({("p", 0)})
        e.stamp()
        if NPRE < 7: pload(NPRE)
        for s_ in sums(0): e(s_)
        for idx in range(7):
            if idx == 1:
                e.wait_lg_all()
                e("s_barrier")
            if idx == 4:
                e("s_barrier")
            va = []
            if idx < 6:
                e.wait_vm({("p", idx+1)})
                if idx + 1 + NPRE < 7: pload(idx + 1 + NPRE)
                va = sums(idx+1)
            else:
                e("s_nop 1")
            nxt = hreads(idx+1) if idx < 6 else []
            ri = 0; vi = 0
            per = -(-len(va) // 14)
            for T in range(7):
                e.wait_lg({("h", idx, T)})
                h = HF + (idx & 1)*28 + T*4
                for u in range(2):
                    p = PF + (idx*4 + u)*4; a_ = acc2(T, u)
                    e(f"v_mfma_f32_16x16x32_bf16 v[{a_}:{a_+3}], v[{h}:{h+3}], v[{p}:{p+3}], v[{a_}:{a_+3}]")
                    if ri < len(nxt) and u == 0:
                        e.lds(*nxt[ri]); ri += 1
                    for _ in range(per):
                        if vi < len(va):
                            e(va[vi]); vi += 1
            while ri < len(nxt):
                e.lds(*nxt[ri]); ri += 1
            while vi < len(va):
                e(va[vi]); vi += 1
            e("s_nop 1")
    e.vm = []; e.lg = []
    e.stamp()
    RS = 81920
    e("s_mul_i32 s48, s17, 14336")
    e(f"s_add_u32 s48, s48, {RS}")
    e("v_add_u32 v4, s48, v2")
    e("v_and_b32 v5, 15, v0")
    e("v_mul_u32_u24 v5, 896, v5")
    e("v_lshl_add_u32 v7, v3, 4, v5")
    e("v_lshl_add_u32 v8, v3, 3, v5")
    e("s_lshl_b32 s48, s14, 1")
    e("s_add_u32 s48, s48, s16")
    e("s_mul_i32 s48, s48, 28672")
    e("s_mul_i32 s49, s15, 224")
    e("s_add_u32 s48, s48, s49")
    for ii in range(2):
        e("s_lshl_b32 s24, s17, 1")
        if ii: e("s_add_u32 s24, s24, 1")
        e("s_sub_u32 s25, s24, 3")
        e("s_cmp_ge_u32 s24, 3")
        e("s_cselect_b32 s24, s25, s24")
        e("s_cselect_b32 s25, 1, 0")
        e("s_lshl_b32 s26, s24, 12")
        e("s_lshl_b32 s27, s25, 10")
        e("s_add_u32 s26, s26, s27")
        e(f"s_add_u32 s26, s26, {RS}")
        e(f"v_add_u32 v{10+ii}, s26, v2")
        e("s_mul_i32 s25, s25, 14336")
        e("s_lshl_b32 s24, s24, 6")
        e("s_add_u32 s24, s24, s25")
        e(f"s_add_u32 s{91+ii}, s24, s48")
    if not NOB20: e("s_barrier")
    for T in range(7):
        for u in range(2):
            a = acc2(T, u)
            e(f"ds_write_b128 v4, v[{a}:{a+3}] offset:{(T*2+u)*1024}")
    e("s_waitcnt lgkmcnt(0)")
    e("s_barrier")
    e("s_cmp_eq_u32 s17, 3")
    e("s_cbranch_scc1 L_fin3")
    def red(r, o):
        for q in range(4):
            e(f"v_add_f32 v{r+q}, v{r+q}, v{r+4+q}")
            e(f"v_add_f32 v{r+8+q}, v{r+8+q}, v{r+12+q}")
        for q in range(4):
            e(f"v_add_f32 v{r+q}, v{r+q}, v{r+8+q}")
        e(f"v_cvt_pk_bf16_f32 v{o}, v{r}, v{r+1}")
        e(f"v_cvt_pk_bf16_f32 v{o+1}, v{r+2}, v{r+3}")
    for ii in range(2):
        for ti in range(2):
            for ww in range(4):
                r = 88 + ii*32 + (ti*4+ww)*4
                e(f"ds_read_b128 v[{r}:{r+3}], v{10+ii} offset:{ww*14336 + ti*2048}")
    for ii in range(2):
        e(f"s_waitcnt lgkmcnt({8 if ii == 0 else 0})")
        for ti in range(2):
            red(88 + ii*32 + ti*16, 160 + ii*4 + 2*ti)
        e(f"buffer_store_dwordx4 v[{160+ii*4}:{163+ii*4}], v7, s[20:23], s{91+ii} offen {OUTF}")
    e("s_branch L_end")
    e.label("L_fin3")
    e(f"v_add_u32 v10, {RS + 12*1024}, v2")
    e("s_add_u32 s49, s48, 14336")
    for u in range(2):
        for ww in range(4):
            r = 88 + u*16 + ww*4
            e(f"ds_read_b128 v[{r}:{r+3}], v10 offset:{ww*14336 + u*1024}")
    e("s_waitcnt lgkmcnt(0)")
    for u in range(2):
        red(88 + u*16, 160 + 2*u)
        e(f"buffer_store_dwordx2 v[{160+2*u}:{161+2*u}], v8, s[20:23], s{48+u} offen offset:192 {OUTF}")
    e.label("L_end")
    if STAMP:
        e("s_waitcnt vmcnt(0)")
        e.nst = max(nst_l, e.nst)
        e.stamp()
        e.stamp_flush()
    e.label("L_done")
    e("s_endpgm")
    e.label("L_clrslow")
    e("s_sleep 8")
    e("buffer_load_dword v14, v12, s[48:51], s3 offen sc1")
    e("s_add_u32 s28, s28, 1")
    e("s_waitcnt vmcnt(0)")
    e("v_readfirstlane_b32 s30, v14")
    e("s_cmp_eq_u32 s30, 1")
    e("s_cbranch_scc1 L_clrok")
    e("s_cmp_lt_u32 s28, 0x400000")
    e("s_cbranch_scc1 L_clrslow")
    e("s_branch L_clrok")
    e.label("L_codeend")
    return e.text()

hdr = open("standalone__spectral_fnet__prompt.s.ref").read().split("; Override")[0]
out = hdr
out += f"; @launch grid=(256,1,1) block=(384,1,1) lds=163840\n"
out += '.amdgcn_target "amdgcn-amd-amdhsa--gfx950"\n.text\n'
out += gen()
out += f'''.section .rodata,"a"
.p2align 6
.amdhsa_kernel {NAME}
  .amdhsa_next_free_vgpr 256
  .amdhsa_next_free_sgpr 102
  .amdhsa_accum_offset 256
  .amdhsa_group_segment_fixed_size 0
  .amdhsa_kernarg_size 64
  .amdhsa_user_sgpr_count 2
  .amdhsa_user_sgpr_kernarg_segment_ptr 1
  .amdhsa_system_sgpr_workgroup_id_x 1
.end_amdhsa_kernel
'''
open(sys.argv[1], "w").write(out)
```

```python
import sys
def opt(name, default):
    for a in sys.argv:
        if a.startswith(f"--{name}="): return type(default)(a.split("=")[1])
    return default
STAMP = '--stamp' in sys.argv
MEMT = 's_memrealtime' if '--rt' in sys.argv else 's_memtime'
SLEEP = opt("sleep", 4)
NPRE = opt("npre", 2)
LOOK = opt("look", 4)
HPB = opt("hpb", 3)
CHKST = opt("chkst", 12)
PERST = opt("perst", 0)
HLATE = opt("hlate", 2)
LPRIO = opt("lprio", 0)
CPRIO = opt("cprio", 0)
OUTF = opt("outf", "")
SKIPH = opt("skiph", 1)
PSUM = opt("psum", 0)
CPF = opt("cpf", 0)
NOB20 = opt("nob20", 0)
ORD = opt("ord", 2)
MAPA = opt("mapa", 0)
M32 = opt("m32", 0)
TLBW = opt("tlbw", 0)
NTC = opt("ntc", 0)
NTX = opt("ntx", 0)

class Em:
    def __init__(self):
        self.lines = []; self.vm = []; self.lg = []; self.nst = 0
    def __call__(self, s): self.lines.append("    " + s)
    def label(self, s): self.lines.append(s + ":")
    def vmem(self, s, tag): self(s); self.vm.append(tag)
    def lds(self, s, tag): self(s); self.lg.append(tag)
    def wait_vm(self, tags):
        idx = [i for i, t in enumerate(self.vm) if t in tags]
        if not idx: return
        n = min(len(self.vm) - 1 - max(idx), 63)
        self(f"s_waitcnt vmcnt({n})")
        self.vm = self.vm[len(self.vm) - n:] if n > 0 else []
    def wait_lg(self, tags):
        idx = [i for i, t in enumerate(self.lg) if t in tags]
        if not idx: return
        n = min(len(self.lg) - 1 - max(idx), 15)
        self(f"s_waitcnt lgkmcnt({n})")
        self.lg = self.lg[len(self.lg) - n:] if n > 0 else []
    def wait_lg_all(self): self("s_waitcnt lgkmcnt(0)"); self.lg = []
    def wait_vm_all(self): self("s_waitcnt vmcnt(0)"); self.vm = []
    def stamp(self):
        if not STAMP: return
        self.nst += 1
        r = 58 + 2*self.nst
        assert r < 84
        self(f"{MEMT} s[{r}:{r+1}]")
    def stamp_flush(self):
        if not STAMP: return
        self("s_memrealtime s[56:57]")
        self("s_waitcnt lgkmcnt(0)")
        self("s_lshl_b32 s50, s2, 3")
        self("s_add_u32 s50, s50, s17")
        self("s_lshl_b32 s50, s50, 8")
        self(f"s_add_u32 s50, s50, {0x1000000}")
        self("v_mov_b32 v1, 0")
        regs = [54, 56] + [58 + 2*i for i in range(1, self.nst+1)]
        for i, r in enumerate(regs):
            self(f"v_mov_b32 v3, s{r}")
            self(f"buffer_store_dword v3, v1, s[32:35], s50 offen offset:{4*i}")
            self("s_nop 1")
        if PERST:
            self("v_mbcnt_lo_u32_b32 v1, -1, 0")
            self("v_lshlrev_b32 v1, 2, v1")
            self("s_mov_b32 exec_lo, 0xffffff")
            self("s_mov_b32 exec_hi, 0")
            self(f"buffer_store_dword v60, v1, s[32:35], s50 offen offset:128")
    def pst(self):
        if not PERST: return
        self(f"{MEMT} s[84:85]")
        self("s_mov_b32 m0, s88")
        self("s_waitcnt lgkmcnt(0)")
        self("v_writelane_b32 v60, s84, m0")
        self("s_add_u32 s88, s88, 1")
    def text(self): return "\n".join(self.lines) + "\n"

SLOT = 32768; XOFF = 16384; NSLOT = 5
HST = 14336
HPOSN = [32768 + n*HST for n in range(9)] + [0, HST] + [32768, 32768 + HST, 32768 + 2*HST]
def hbar(pos):
    a = HPOSN[pos]; b = a + HST - 1
    need = 0
    for sl in range(a // SLOT, b // SLOT + 1):
        last = max(st for st in range(16) if st % NSLOT == sl)
        need = max(need, last + 1)
    return need
NAME = "standalone__spectral_fnet__prompt_kernel"

def ord_tables():
    tabs = []
    for ph in range(4):
        if ORD == 1:
            order = [(t + 4*ph) & 15 for t in range(16)]
        elif ORD == 2:
            lead_t = {0: ph}
            for r in range(1, 4): lead_t[4*(r-1) + 1 + ph] = 4*r + ph
            fq = [4*r + ((ph + d) & 3) for r in range(4) for d in (1, 2, 3)]
            order = []
            for t in range(16):
                order.append(lead_t[t] if t in lead_t else fq.pop(0))
        elif ORD >= 10:
            LT = {
              10: lambda ph: [0, 1, 2+ph, 6+ph],
              11: lambda ph: [0, 1+(ph>>1), 4+ph, 8+ph],
              12: lambda ph: [0, 1+ph, 4+ph, 7+ph],
              13: lambda ph: [0, 2+ph, 6+ph, 10+ph],
              14: lambda ph: [0, 1+ph, 5+ph, 8+ph],
              15: lambda ph: [0, 1, 3+(ph>>1)*2, 6+(ph>>1)*2+(ph&1)],
            }[ORD](ph)
            lead_t = {t_: 4*r + ph for r, t_ in enumerate(LT)}
            fq = [4*r + ((ph + d) & 3) for r in range(4) for d in (1, 2, 3)]
            order = []
            for t in range(16):
                order.append(lead_t[t] if t in lead_t else fq.pop(0))
        elif ORD == 3:
            order = [4*r + ((ph + d) & 3) for r in range(4) for d in range(4)]
        assert sorted(order) == list(range(16))
        v = 0
        for t, s_ in enumerate(order): v |= s_ << (4*t)
        tabs.append(v)
    return tabs
def rot2(e, dst):
    e(f"s_mul_i32 s{dst}, s15, 7")
    e(f"s_add_u32 s{dst}, s{dst}, 1")
    e(f"s_lshr_b32 s{dst}, s{dst}, 1")
    e(f"s_and_b32 s98, s14, 7")
    e(f"s_mul_i32 s98, s98, 7")
    e(f"s_lshr_b32 s98, s98, 2")
    e(f"s_add_u32 s{dst}, s{dst}, s98")
    e(f"s_sub_u32 s98, s{dst}, 14")
    e(f"s_cmp_ge_u32 s{dst}, 14")
    e(f"s_cselect_b32 s{dst}, s98, s{dst}")

def gen():
    e = Em()
    e.lines.append(f".globl {NAME}\n.p2align 8\n.type {NAME},@function\n{NAME}:")
    e("s_cmp_ge_u32 s2, 256")
    e("s_cbranch_scc1 L_done")
    e("s_load_dwordx8 s[4:11], s[0:1], 0")
    e("s_load_dwordx8 s[36:43], s[0:1], 32")
    if STAMP: e("s_memrealtime s[54:55]")
    e.stamp()
    e("v_lshrrev_b32 v1, 6, v0")
    e("v_and_b32 v0, 63, v0")
    e("v_readfirstlane_b32 s17, v1")
    e("s_lshr_b32 s13, s2, 3")
    e("s_and_b32 s15, s13, 3")
    e("s_and_b32 s16, s2, 1")
    e("s_bfe_u32 s14, s2, 0x20001")
    e("s_lshl_b32 s14, s14, 3")
    e("s_lshr_b32 s12, s13, 2")
    e("s_add_u32 s14, s14, s12")
    if MAPA:
        e("s_and_b32 s14, s2, 7")
        e("s_lshl_b32 s14, s14, 2")
        e("s_lshr_b32 s12, s13, 3")
        e("s_add_u32 s14, s14, s12")
        e("s_bfe_u32 s16, s13, 0x10002")
    e("s_lshl_b32 s90, s15, 2")
    e("s_and_b32 s12, s15, 2")
    e("s_sub_u32 s90, s90, s12")
    e("v_lshrrev_b32 v3, 4, v0")
    e("v_lshlrev_b32 v2, 4, v0")
    e("s_mov_b32 s34, 0x10000000"); e("s_mov_b32 s35, 0x00020000")
    e("s_cmp_lt_u32 s17, 4")
    e("s_cbranch_scc1 L_compute")
    if LPRIO: e(f"s_setprio {LPRIO}")
    e("s_sub_u32 s18, s17, 4")
    e("v_lshrrev_b32 v20, 3, v0")
    e("v_and_b32 v21, 7, v0")
    e("v_lshrrev_b32 v22, 1, v20")
    e("v_xor_b32 v23, v22, v21")
    e("v_xor_b32 v24, 4, v23")
    e("v_lshlrev_b32 v25, 12, v20")
    e("v_lshl_add_u32 v23, v23, 4, v25")
    e("v_lshl_add_u32 v24, v24, 4, v25")
    for q in range(8):
        e(f"v_add_u32 v{4+q}, {8*q*4096 - 1024*(q&3)}, v{24 if q & 1 else 23}")
    e("v_and_b32 v22, 15, v0")
    e("v_lshlrev_b32 v23, 2, v3")
    e("v_xor_b32 v22, v22, v23")
    e("v_xor_b32 v24, 2, v22")
    e("v_mul_u32_u24 v23, 896, v3")
    e("v_lshl_add_u32 v22, v22, 4, v23")
    e("v_lshl_add_u32 v24, v24, 4, v23")
    for q in range(8):
        e(f"v_add_u32 v{12+q}, {4*q*896 - 1024*(q&3)}, v{24 if (q>>1)&1 else 22}")
    e("s_lshl_b32 s52, s14, 18")
    e("s_lshl_b32 s49, s16, 11")
    e("s_add_u32 s52, s52, s49")
    e("s_lshl_b32 s53, s16, 10")
    e("s_lshl_b32 s50, s18, 5")
    e("s_add_u32 s53, s53, s50")
    e("s_mul_i32 s53, s53, 896")
    e("s_lshl_b32 s50, s90, 6")
    e("s_add_u32 s53, s53, s50")
    if ORD:
        e("s_mov_b32 s94, s52"); e("s_mov_b32 s95, s53")
        e("s_add_u32 s3, s14, s15")
        e("s_and_b32 s3, s3, 3")
        tb = ord_tables()
        e(f"s_mov_b32 s96, {tb[0] & 0xffffffff}"); e(f"s_mov_b32 s97, {tb[0] >> 32}")
        for ph in (1, 2, 3):
            e(f"s_cmp_eq_u32 s3, {ph}")
            e(f"s_cselect_b32 s96, {tb[ph] & 0xffffffff}, s96")
            e(f"s_cselect_b32 s97, {tb[ph] >> 32}, s97")
    e("s_lshl_b32 s50, s18, 13")
    e(f"s_add_u32 s51, s50, {SLOT*NSLOT}")
    e("s_mov_b32 s26, 0x800000"); e("s_mov_b32 s27, 0x00020000")
    e("s_mov_b32 s30, 1835008"); e("s_mov_b32 s31, 0x00020000")
    e("s_mov_b32 s46, 401408"); e("s_mov_b32 s47, 0x00020000")
    e("s_mov_b32 s3, 0")
    e("s_cmp_eq_u32 s18, 1")
    e("s_waitcnt lgkmcnt(0)")
    e("s_cselect_b32 s24, s8, s6")
    e("s_cselect_b32 s25, s9, s7")
    e("s_mov_b32 s28, s4"); e("s_mov_b32 s29, s5")
    e("s_mov_b32 s32, s42"); e("s_mov_b32 s33, s43")
    e("s_mov_b32 s44, s10"); e("s_mov_b32 s45, s11")
    e("s_getpc_b64 s[86:87]")
    e("s_add_u32 s86, s86, L_after0 - . + 4 - 4")
    e.lines.pop(); e.lines.pop()
    e("s_call_b64 s[86:87], L_issue")
    e("s_branch L_lcont")
    e.label("L_issue")
    if ORD:
        e("s_and_b32 s49, s96, 15")
        e("s_lshr_b64 s[96:97], s[96:97], 4")
        e("s_lshl_b32 s52, s49, 7")
        e("s_add_u32 s52, s52, s94")
        e(f"s_mul_i32 s53, s49, {64*896}")
        e("s_add_u32 s53, s53, s95")
    for part in range(2):
        for q in range(8):
            if (q & 3) == 0:
                e(f"s_add_u32 m0, s50, {part*XOFF + q*1024}")
                e("s_nop 0")
            off = f" offset:{1024*(q&3)}"
            if part == 0:
                e(f"buffer_load_dwordx4 v{4+q}, s[24:27], s52 offen{off}{' nt' if NTC else ''} lds")
            else:
                e(f"buffer_load_dwordx4 v{12+q}, s[28:31], s53 offen{off}{' nt' if NTX else ''} lds")
    e("s_add_u32 s52, s52, 128")
    e(f"s_add_u32 s53, s53, {64*896}")
    e(f"s_add_u32 s50, s50, {SLOT}")
    e(f"s_sub_u32 s49, s50, {SLOT*NSLOT}")
    e("s_cmp_ge_u32 s50, s51")
    e("s_cselect_b32 s50, s49, s50")
    e("s_setpc_b64 s[86:87]")
    e.label("L_lcont")
    e("s_call_b64 s[86:87], L_issue")
    e.stamp()
    e("s_lshl_b32 s12, s18, 3")
    e("v_add_u32 v27, s12, v20")
    for n in range(7):
        e(f"v_add_u32 v23, {16*n}, v27")
        e("v_bfe_u32 v24, v23, 1, 3")
        e("v_xor_b32 v24, v24, v21")
        if n < 6:
            e("v_bfe_u32 v25, v23, 2, 2")
            e("v_and_b32 v26, 3, v23")
            e("v_lshl_add_u32 v25, v25, 3, v26")
            e(f"v_add_u32 v23, {32*(n>>1) + 4*(n&1)}, v25")
        e("v_mul_u32_u24 v23, 896, v23")
        e(f"v_lshl_add_u32 v{32+n}, v24, 4, v23")
    e("s_mul_i32 s19, s15, 100352")
    e("s_lshl_b32 s12, s18, 10")
    rot2(e, 91)
    if PERST: e("s_mov_b32 s88, 0")
    if LOOK == 4:
        e("s_waitcnt vmcnt(16)")
        e("s_barrier"); e.pst()
        e("s_call_b64 s[86:87], L_issue")
        e("s_call_b64 s[86:87], L_issue")
        e("s_waitcnt vmcnt(32)")
        e("s_barrier"); e.pst()
        e("s_call_b64 s[86:87], L_issue")
        e("s_call_b64 s[86:87], L_issue")
        e("s_mov_b32 s3, 2")
    elif LOOK == 3:
        e("s_waitcnt vmcnt(16)")
        e("s_barrier"); e.pst()
        e("s_call_b64 s[86:87], L_issue")
        e("s_call_b64 s[86:87], L_issue")
        e("s_mov_b32 s3, 1")
    e.label("L_lloop")
    e(f"s_waitcnt vmcnt({16*(LOOK-1)})")
    e("s_barrier"); e.pst()
    e("s_call_b64 s[86:87], L_issue")
    e("s_add_u32 s3, s3, 1")
    e(f"s_cmp_lt_u32 s3, {16-LOOK}")
    e("s_cbranch_scc1 L_lloop")
    e.vm = [("s", st) for st in range(16-LOOK, 16) for _ in range(16)]
    def hstage(pos):
        e(f"s_add_u32 s92, s12, {HPOSN[pos]}")
        e("s_call_b64 s[86:87], L_hissue")
        e.vm += [("h", pos)]*7
    hn = 0
    for b in range(16-LOOK, 17):
        if b < 16: e.wait_vm({("s", b)})
        e("s_barrier"); e.pst()
        cnt = 0
        while hn < (11 - HLATE) and hbar(hn) <= b and (cnt < HPB or b == 16):
            hstage(hn); hn += 1; cnt += 1
    e.stamp()
    e("s_barrier"); e.pst()
    early = set(("h", p_) for p_ in range(11 - HLATE))
    for p_ in range(11 - HLATE, 11): hstage(p_)
    e.wait_vm(early)
    e.stamp()
    e("s_barrier"); e.pst()
    e.wait_vm_all()
    e("s_barrier"); e.pst()
    hstage(11); hstage(12); hstage(13)
    e.wait_vm_all()
    e("s_barrier"); e.pst()
    if not NOB20: e("s_barrier"); e.pst()
    e("s_barrier"); e.pst()
    e("s_branch L_end")
    e.label("L_hissue")
    e("s_sub_u32 s53, s91, 7")
    e("s_cmp_ge_u32 s91, 7")
    e("s_cselect_b32 s52, s53, s91")
    e("s_cselect_b32 s44, s36, s10")
    e("s_cselect_b32 s45, s37, s11")
    e("s_lshl_b32 s52, s52, 7")
    e("s_add_u32 s52, s52, s19")
    for n in range(7):
        e(f"s_add_u32 m0, s92, {n*2048}")
        e("s_nop 0")
        e(f"buffer_load_dwordx4 v{32+n}, s[44:47], s52 offen lds")
    e("s_add_u32 s91, s91, 1")
    e("s_cmp_ge_u32 s91, 14")
    e("s_cselect_b32 s91, 0, s91")
    e("s_setpc_b64 s[86:87]")
    nst_l = e.nst
    e.label("L_compute")
    e.vm = []; e.lg = []
    e.nst = 1
    if CPRIO: e(f"s_setprio {CPRIO}")
    if CPF:
        e("s_getpc_b64 s[26:27]")
        e.label("L_pcref")
        e(f"s_sub_u32 s26, s26, L_pcref - {NAME}")
        e("s_subb_u32 s27, s27, 0")
        e("s_lshl_b32 s12, s17, 13")
        e("v_lshlrev_b32 v45, 7, v0")
        e("v_add_u32 v45, s12, v45")
        e(f"v_min_u32 v45, L_codeend - {NAME} - 4, v45")
        e("s_cmp_ge_u32 s17, 2")
        e("s_cbranch_scc1 L_nocpf")
        if CPF == 2:
            e("s_cmp_ge_u32 s13, 1")
            e("s_cbranch_scc1 L_nocpf")
        e("global_load_dword v46, v45, s[26:27]")
        e.label("L_nocpf")
    e("s_lshr_b32 s18, s17, 1")
    e("s_and_b32 s19, s17, 1")
    e("s_lshl_b32 s24, s16, 1")
    e("s_add_u32 s24, s24, s18")
    e("s_lshl_b32 s24, s24, 7")
    e("s_lshl_b32 s12, s14, 2")
    e("s_add_u32 s24, s24, s12")
    e("s_mul_i32 s24, s24, 14")
    e("s_add_u32 s24, s24, s90")
    e("s_lshl_b32 s12, s19, 1")
    e("s_add_u32 s24, s24, s12")
    e("s_lshl_b32 s24, s24, 10")
    e("s_add_u32 s25, s24, 1024")
    e("s_lshl_b32 s12, s15, 1")
    e("s_add_u32 s12, s12, s19")
    e("s_cmp_eq_u32 s12, 4")
    e("s_cselect_b32 s24, s25, s24")
    e("s_cselect_b32 s31, 4, 0")
    e("s_sub_u32 s12, s12, 3")
    e("s_cmp_lt_u32 s12, 2")
    e("s_cselect_b32 s25, 0x7f000000, s25")
    e("s_cselect_b32 s89, 1, 0")
    for u in range(4):
        e(f"v_add_u32 v{40+u}, {u*14336}, v2")
    e("v_mov_b64 v[14:15], 0")
    e("v_mov_b32 v12, 0")
    e("v_mov_b32 v13, 1")
    e("s_mov_b32 s50, 256"); e("s_mov_b32 s51, 0x00020000")
    e("s_mov_b32 s22, 1835008"); e("s_mov_b32 s23, 0x00020000")
    e("s_lshl_b32 s52, s14, 7")
    e(f"s_add_u32 s52, s52, {0xF000000}")
    e("s_lshl_b32 s53, s16, 2")
    e("s_add_u32 s53, s53, s15")
    e("s_waitcnt lgkmcnt(0)")
    e("s_mov_b32 s32, s42"); e("s_mov_b32 s33, s43")
    e("s_mov_b32 s20, s38"); e("s_mov_b32 s21, s39")
    e("s_mov_b32 s48, s40"); e("s_mov_b32 s49, s41")
    e("s_or_b32 s12, s53, s17")
    e("s_cmp_lg_u32 s12, 0")
    e("s_cbranch_scc1 L_noclear")
    e("s_mov_b64 exec, 1")
    e("buffer_store_dwordx2 v[14:15], v12, s[32:35], s52 offen sc1")
    e("s_waitcnt vmcnt(0)")
    e("s_lshl_b32 s12, s14, 2")
    e("buffer_store_dword v13, v12, s[48:51], s12 offen sc1")
    e("s_mov_b64 exec, -1")
    e.label("L_noclear")
    e("s_add_u32 s53, s53, s52")
    if TLBW:
        e("s_cmp_lg_u32 s17, 1")
        e("s_cbranch_scc1 L_tw2")
        e("s_mov_b64 exec, 0xf")
        e(f"s_mov_b32 s12, {128*14336}")
        e("v_mul_lo_u32 v45, v0, s12")
        e("s_lshl_b32 s12, s14, 2")
        e("s_mul_i32 s12, s12, 14336")
        e("buffer_load_dword v46, v45, s[32:35], s12 offen sc1")
        e("s_mov_b64 exec, 1")
        e("s_add_u32 s12, s52, 64")
        e("buffer_load_dword v47, v12, s[32:35], s12 offen sc1")
        e("s_mov_b64 exec, -1")
        e.label("L_tw2")
        e("s_cmp_lg_u32 s17, 2")
        e("s_cbranch_scc1 L_tw3")
        e("s_mov_b64 exec, 1")
        e("s_mul_i32 s12, s14, 57344")
        e("buffer_load_dword v46, v12, s[20:23], s12 offen sc1")
        e("s_mov_b64 exec, -1")
        e.label("L_tw3")
        e("s_cmp_lg_u32 s17, 3")
        e("s_cbranch_scc1 L_tw4")
        e("s_mov_b64 exec, 1")
        e("global_load_dword v46, v12, s[10:11]")
        e("global_load_dword v47, v12, s[36:37]")
        e("s_mov_b64 exec, -1")
        e.label("L_tw4")
    AB = 16
    AC = 22
    e("v_and_b32 v5, 15, v0")
    e("v_lshrrev_b32 v12, 1, v5")
    e("v_xor_b32 v12, v12, v3")
    e("v_lshlrev_b32 v12, 4, v12")
    e("v_lshl_add_u32 v12, v5, 7, v12")
    e("s_lshl_b32 s12, s18, 13")
    e(f"v_add_u32 v{AB}, s12, v12")
    e(f"v_xor_b32 v{AB+1}, 64, v{AB}")
    e("v_bfe_u32 v5, v0, 2, 2")
    e("v_lshl_add_u32 v12, v3, 3, v5")
    e("v_lshlrev_b32 v12, 8, v12")
    e(f"v_add_u32 v12, {XOFF}, v12")
    e("v_and_b32 v13, 3, v0")
    e("v_lshrrev_b32 v14, 1, v13")
    e("v_xor_b32 v14, v14, v13")
    e("v_and_b32 v14, 1, v14")
    e("v_lshl_add_u32 v12, v14, 3, v12")
    e("v_and_b32 v14, 1, v3")
    e("v_lshlrev_b32 v14, 1, v14")
    e("v_xor_b32 v13, v13, v14")
    e("v_lshl_add_u32 v13, v5, 2, v13")
    e("s_lshl_b32 s12, s19, 3")
    e("s_xor_b32 s12, s12, s31")
    e("v_xor_b32 v13, s12, v13")
    for pp in range(2):
        e(f"v_xor_b32 v14, {4*pp}, v13")
        e(f"v_lshl_add_u32 v{AB+2+pp}, v14, 4, v12")
        e(f"v_xor_b32 v{AB+4+pp}, 8, v{AB+2+pp}")
    for t in range(6):
        e(f"v_mov_b32 v{AC+t}, v{AB+t}")
    ACC = 48; FR = 112
    def acc(T, u): return ACC + (T*4+u)*4
    def xf(buf, T): return FR + buf*32 + T*4
    def cf(buf, u): return FR + buf*32 + 16 + u*4
    for r in range(0, 64, 2):
        e(f"v_mov_b64 v[{ACC+r}:{ACC+r+1}], 0")
    e("v_mov_b32 v12, 0")
    e("v_mov_b32 v13, 1")
    e("s_mov_b32 vcc_lo, 0xffff0000")
    e("s_mov_b32 vcc_hi, 0x0000ffff")
    e("s_cmp_eq_u32 s18, 1")
    e("s_cselect_b32 s12, 0x80008000, 0")
    def reads(kk, NT=4):
        buf = kk
        out = []
        def xr(T):
            reg = AC + 2 + 2*(T & 1) + (T >> 1)
            for h in range(2):
                off = kk*8192 + h*1024
                d = xf(buf, T) + 2*h
                out.append((f"ds_read_b64_tr_b16 v[{d}:{d+1}], v{reg} offset:{off}", ("f", kk, "x", T)))
        def cr(u):
            d = cf(buf, u)
            out.append((f"ds_read_b128 v[{d}:{d+3}], v{AC+kk} offset:{u*2048}", ("f", kk, "c", u)))
        xr(0)
        for u in range(4): cr(u)
        for T in range(1, NT): xr(T)
        return out
    e("s_mov_b32 s28, 0")
    e("s_mov_b32 s29, 0")
    e.stamp()
    e("s_barrier")
    e.stamp()
    def mainloop(NT, lab):
        e.lg = []
        for s_, tag in reads(0, NT): e.lds(s_, tag)
        e.label(lab)
        for kk in range(2):
            nxt = reads(1 - kk, NT)
            ri = 0; mi = 0
            BARPOS = 3 if kk == 1 else 0
            nsl = NT*4
            for T in range(NT):
                for u in range(4):
                    e.wait_lg({("f", kk, "x", T), ("f", kk, "c", u)})
                    x = xf(kk, T); c = cf(kk, u); a = acc(T, u)
                    if not M32:
                        e(f"v_mfma_f32_16x16x32_bf16 v[{a}:{a+3}], v[{x}:{x+3}], v[{c}:{c+3}], v[{a}:{a+3}]")
                    elif u & 1:
                        a32 = ACC + ((T >> 1)*2 + (u >> 1))*16
                        e(f"v_mfma_f32_32x32x16_bf16 v[{a32}:{a32+15}], v[{x}:{x+3}], v[{c}:{c+3}], v[{a32}:{a32+15}]")
                    if kk == 1 and mi < 3:
                        if mi == 0:
                            e(f"s_add_u32 s29, s29, {SLOT}")
                            e(f"s_cmp_ge_u32 s29, {SLOT*NSLOT}")
                            e("s_cselect_b32 s29, 0, s29")
                        for t in range(2*mi, 2*mi+2):
                            e(f"v_add_u32 v{AC+t}, s29, v{AB+t}")
                    if kk == 1 and mi == BARPOS:
                        e.wait_lg_all()
                        e("s_barrier")
                    if mi >= BARPOS and ri < len(nxt):
                        n_ = 2 if ((kk == 1 and mi < BARPOS + 2) or NT == 2) else 1
                        for _ in range(n_):
                            if ri < len(nxt):
                                e.lds(*nxt[ri]); ri += 1
                    mi += 1
            assert ri == len(nxt)
        e("s_add_u32 s28, s28, 1")
        e("s_cmp_lt_u32 s28, 16")
        e(f"s_cbranch_scc1 {lab}")
    if SKIPH:
        e("s_cmp_eq_u32 s89, 1")
        e("s_cbranch_scc0 L_full")
        mainloop(2, "L_mainh")
        e("s_branch L_mdone")
        e.label("L_full")
    mainloop(4, "L_main")
    e.label("L_mdone")
    e.stamp()
    e("s_lshl_b32 s3, s14, 2")
    e("s_load_dword s30, s[40:41], s3")
    e("s_nop 2")
    tmp = 192
    for u in range(4):
        for pp in range(2):
            t = tmp; tmp += 8
            a = acc(2*pp, u); b = acc(2*pp+1, u)
            e(f"v_cvt_pk_bf16_f32 v{t}, v{a}, v{a+1}")
            e(f"v_cvt_pk_bf16_f32 v{t+1}, v{a+2}, v{a+3}")
            e(f"v_cvt_pk_bf16_f32 v{t+2}, v{b}, v{b+1}")
            e(f"v_cvt_pk_bf16_f32 v{t+3}, v{b+2}, v{b+3}")
            for r in range(4): e(f"v_xor_b32 v{t+r}, s12, v{t+r}")
            e(f"v_cndmask_b32 v{t+4}, v{t}, v{t+2}, vcc")
            e(f"v_cndmask_b32 v{t+5}, v{t+1}, v{t+3}, vcc")
            e(f"v_cndmask_b32 v{t+6}, v{t+2}, v{t}, vcc")
            e(f"v_cndmask_b32 v{t+7}, v{t+3}, v{t+1}, vcc")
            e(f"buffer_store_dwordx4 v[{t+4}:{t+7}], v{40+u}, s[32:35], s{24+pp} offen sc1")
    e.stamp()
    A2 = 32; PF = 88; HF = 200
    def acc2(T, u): return A2 + (T*2+u)*4
    e("s_waitcnt lgkmcnt(0)")
    e.lg = []
    e("v_and_b32 v4, 15, v0")
    e("v_lshrrev_b32 v5, 1, v4")
    e("s_lshl_b32 s24, s19, 2")
    e("v_add_u32 v6, s24, v3")
    e("v_xor_b32 v5, v5, v6")
    e("v_lshlrev_b32 v5, 4, v5")
    e("v_lshl_add_u32 v5, v4, 7, v5")
    e("s_lshl_b32 s24, s14, 2")
    e("s_lshl_b32 s25, s16, 1")
    e("s_add_u32 s24, s24, s25")
    e("s_mul_i32 s24, s24, 14336")
    e("s_lshl_b32 s25, s19, 10")
    e("s_add_u32 s24, s24, s25")
    rot2(e, 26)
    e("s_add_u32 s26, s26, s18")
    for idx in range(7):
        e(f"s_add_u32 s25, s26, {2*idx}")
        e("s_sub_u32 s27, s25, 14")
        e("s_cmp_ge_u32 s25, 14")
        e("s_cselect_b32 s25, s27, s25")
        e("s_sub_u32 s27, s25, 7")
        e("s_cmp_ge_u32 s25, 7")
        e("s_cselect_b32 s25, s27, s25")
        e(f"s_cselect_b32 s27, {128*14336}, 0")
        e("s_lshl_b32 s25, s25, 11")
        e("s_add_u32 s25, s25, s27")
        e(f"s_add_u32 s{91+idx}, s25, s24")
    e("v_mov_b32 v24, v2")
    e("v_add_u32 v25, 14336, v2")
    e(f"v_add_u32 v26, {256*14336}, v2")
    e(f"v_add_u32 v27, {257*14336}, v2")
    e.vm = [("st",)]*8
    def pload(idx, track=True):
        for kp in range(2):
            for u in range(2):
                r = PF + (idx*4 + kp*2 + u)*4
                s_ = f"buffer_load_dwordx4 v[{r}:{r+3}], v{24+kp*2+u}, s[32:35], s{91+idx} offen sc1"
                if track: e.vmem(s_, ("p", idx))
                else: e(s_)
    e("s_cmp_eq_u32 s18, 1")
    for idx in range(7):
        e(f"s_mov_b32 s24, {HPOSN[2*idx]}")
        e(f"s_cselect_b32 s24, {HPOSN[1+2*idx]}, s24")
        e(f"v_add_u32 v{16+idx}, s24, v5")
    for r in range(0, 56, 2):
        e(f"v_mov_b64 v[{A2+r}:{A2+r+1}], 0")
    e.wait_vm_all()
    e.stamp()
    e("s_barrier")
    e("s_cmp_lg_u32 s17, 0")
    e("s_cbranch_scc1 L_nopoll")
    e("s_mov_b64 exec, 1")
    e("s_cmp_eq_u32 s30, 1")
    e("s_cbranch_scc0 L_clrslow")
    e.label("L_clrok")
    e("buffer_store_byte v13, v12, s[32:35], s53 offen sc1")
    e("s_mov_b32 s28, 0")
    e.label("L_poll")
    e("buffer_load_dwordx2 v[14:15], v12, s[32:35], s52 offen sc1")
    e("s_add_u32 s28, s28, 1")
    e("s_waitcnt vmcnt(0)")
    e("v_and_b32 v14, v14, v15")
    e("s_nop 0")
    e("v_readfirstlane_b32 s12, v14")
    e("s_cmp_eq_u32 s12, 0x01010101")
    e("s_cbranch_scc1 L_pollx")
    if SLEEP: e(f"s_sleep {SLEEP}")
    e("s_cmp_lt_u32 s28, 0x400000")
    e("s_cbranch_scc1 L_poll")
    e.label("L_pollx")
    e("s_mov_b64 exec, -1")
    e.label("L_nopoll")
    e("s_barrier")
    e.stamp()
    for idx in range(NPRE): pload(idx)
    def hreads(idx):
        out = []
        for T in range(7):
            d = HF + (idx & 1)*28 + T*4
            out.append((f"ds_read_b128 v[{d}:{d+3}], v{16+idx} offset:{T*2048}", ("h", idx, T)))
        return out
    if not PSUM:
        for s_, tag in hreads(0): e.lds(s_, tag)
        slow = []
        for idx in range(7):
            if idx == 1:
                e.wait_lg_all()
                e("s_barrier")
            if idx == 4:
                e("s_barrier")
            e.wait_vm({("p", idx)})
            if idx == 0: e.stamp()
            if idx + NPRE < 7: pload(idx + NPRE)
            nxt = hreads(idx+1) if idx < 6 else []
            ri = 0
            for T in range(7):
                e.wait_lg({("h", idx, T)})
                h = HF + (idx & 1)*28 + T*4
                for kp in range(2):
                    for u in range(2):
                        p = PF + (idx*4 + kp*2 + u)*4; a = acc2(T, u)
                        e(f"v_mfma_f32_16x16x32_bf16 v[{a}:{a+3}], v[{h}:{h+3}], v[{p}:{p+3}], v[{a}:{a+3}]")
                        if ri < len(nxt) and kp == 1 and u == 0:
                            e.lds(*nxt[ri]); ri += 1
            while ri < len(nxt):
                e.lds(*nxt[ri]); ri += 1
    else:
        for s_, tag in hreads(0): e.lds(s_, tag)
        e("s_mov_b32 s24, 0x05040100")
        e("s_mov_b32 s25, 0x07060302")
        e("v_mov_b32 v28, 0x3f803f80")
        def sums(idx):
            out = []
            for u in range(2):
                for r in range(4):
                    A = PF + (idx*4 + u)*4 + r; B = PF + (idx*4 + 2 + u)*4 + r
                    t0 = 4 + 2*(r & 1); t1 = t0 + 1
                    if PSUM == 1:
                        out.append(f"v_perm_b32 v{t0}, v{B}, v{A}, s24")
                        out.append(f"v_perm_b32 v{t1}, v{B}, v{A}, s25")
                        out.append(f"v_dot2_f32_bf16 v{t0}, v{t0}, v28, 0")
                        out.append(f"v_dot2_f32_bf16 v{t1}, v{t1}, v28, 0")
                        out.append("s_nop 2")
                        out.append(f"v_cvt_pk_bf16_f32 v{A}, v{t0}, v{t1}")
                    else:
                        t2 = 8 + 2*(r & 1); t3 = t2 + 1
                        out.append(f"v_lshlrev_b32 v{t0}, 16, v{A}")
                        out.append(f"v_and_b32 v{t1}, 0xffff0000, v{A}")
                        out.append(f"v_lshlrev_b32 v{t2}, 16, v{B}")
                        out.append(f"v_and_b32 v{t3}, 0xffff0000, v{B}")
                        out.append(f"v_add_f32 v{t0}, v{t0}, v{t2}")
                        out.append(f"v_add_f32 v{t1}, v{t1}, v{t3}")
                        out.append(f"v_cvt_pk_bf16_f32 v{A}, v{t0}, v{t1}")
            return out
        e.wait_vm({("p", 0)})
        e.stamp()
        if NPRE < 7: pload(NPRE)
        for s_ in sums(0): e(s_)
        for idx in range(7):
            if idx == 1:
                e.wait_lg_all()
                e("s_barrier")
            if idx == 4:
                e("s_barrier")
            va = []
            if idx < 6:
                e.wait_vm({("p", idx+1)})
                if idx + 1 + NPRE < 7: pload(idx + 1 + NPRE)
                va = sums(idx+1)
            else:
                e("s_nop 1")
            nxt = hreads(idx+1) if idx < 6 else []
            ri = 0; vi = 0
            per = -(-len(va) // 14)
            for T in range(7):
                e.wait_lg({("h", idx, T)})
                h = HF + (idx & 1)*28 + T*4
                for u in range(2):
                    p = PF + (idx*4 + u)*4; a_ = acc2(T, u)
                    e(f"v_mfma_f32_16x16x32_bf16 v[{a_}:{a_+3}], v[{h}:{h+3}], v[{p}:{p+3}], v[{a_}:{a_+3}]")
                    if ri < len(nxt) and u == 0:
                        e.lds(*nxt[ri]); ri += 1
                    for _ in range(per):
                        if vi < len(va):
                            e(va[vi]); vi += 1
            while ri < len(nxt):
                e.lds(*nxt[ri]); ri += 1
            while vi < len(va):
                e(va[vi]); vi += 1
            e("s_nop 1")
    e.vm = []; e.lg = []
    e.stamp()
    RS = 81920
    e("s_mul_i32 s48, s17, 14336")
    e(f"s_add_u32 s48, s48, {RS}")
    e("v_add_u32 v4, s48, v2")
    e("v_and_b32 v5, 15, v0")
    e("v_mul_u32_u24 v5, 896, v5")
    e("v_lshl_add_u32 v7, v3, 4, v5")
    e("v_lshl_add_u32 v8, v3, 3, v5")
    e("s_lshl_b32 s48, s14, 1")
    e("s_add_u32 s48, s48, s16")
    e("s_mul_i32 s48, s48, 28672")
    e("s_mul_i32 s49, s15, 224")
    e("s_add_u32 s48, s48, s49")
    for ii in range(2):
        e("s_lshl_b32 s24, s17, 1")
        if ii: e("s_add_u32 s24, s24, 1")
        e("s_sub_u32 s25, s24, 3")
        e("s_cmp_ge_u32 s24, 3")
        e("s_cselect_b32 s24, s25, s24")
        e("s_cselect_b32 s25, 1, 0")
        e("s_lshl_b32 s26, s24, 12")
        e("s_lshl_b32 s27, s25, 10")
        e("s_add_u32 s26, s26, s27")
        e(f"s_add_u32 s26, s26, {RS}")
        e(f"v_add_u32 v{10+ii}, s26, v2")
        e("s_mul_i32 s25, s25, 14336")
        e("s_lshl_b32 s24, s24, 6")
        e("s_add_u32 s24, s24, s25")
        e(f"s_add_u32 s{91+ii}, s24, s48")
    if not NOB20: e("s_barrier")
    for T in range(7):
        for u in range(2):
            a = acc2(T, u)
            e(f"ds_write_b128 v4, v[{a}:{a+3}] offset:{(T*2+u)*1024}")
    e("s_waitcnt lgkmcnt(0)")
    e("s_barrier")
    e("s_cmp_eq_u32 s17, 3")
    e("s_cbranch_scc1 L_fin3")
    def red(r, o):
        for q in range(4):
            e(f"v_add_f32 v{r+q}, v{r+q}, v{r+4+q}")
            e(f"v_add_f32 v{r+8+q}, v{r+8+q}, v{r+12+q}")
        for q in range(4):
            e(f"v_add_f32 v{r+q}, v{r+q}, v{r+8+q}")
        e(f"v_cvt_pk_bf16_f32 v{o}, v{r}, v{r+1}")
        e(f"v_cvt_pk_bf16_f32 v{o+1}, v{r+2}, v{r+3}")
    for ii in range(2):
        for ti in range(2):
            for ww in range(4):
                r = 88 + ii*32 + (ti*4+ww)*4
                e(f"ds_read_b128 v[{r}:{r+3}], v{10+ii} offset:{ww*14336 + ti*2048}")
    for ii in range(2):
        e(f"s_waitcnt lgkmcnt({8 if ii == 0 else 0})")
        for ti in range(2):
            red(88 + ii*32 + ti*16, 160 + ii*4 + 2*ti)
        e(f"buffer_store_dwordx4 v[{160+ii*4}:{163+ii*4}], v7, s[20:23], s{91+ii} offen {OUTF}")
    e("s_branch L_end")
    e.label("L_fin3")
    e(f"v_add_u32 v10, {RS + 12*1024}, v2")
    e("s_add_u32 s49, s48, 14336")
    for u in range(2):
        for ww in range(4):
            r = 88 + u*16 + ww*4
            e(f"ds_read_b128 v[{r}:{r+3}], v10 offset:{ww*14336 + u*1024}")
    e("s_waitcnt lgkmcnt(0)")
    for u in range(2):
        red(88 + u*16, 160 + 2*u)
        e(f"buffer_store_dwordx2 v[{160+2*u}:{161+2*u}], v8, s[20:23], s{48+u} offen offset:192 {OUTF}")
    e.label("L_end")
    if STAMP:
        e("s_waitcnt vmcnt(0)")
        e.nst = max(nst_l, e.nst)
        e.stamp()
        e.stamp_flush()
    e.label("L_done")
    e("s_endpgm")
    e.label("L_clrslow")
    e("s_sleep 8")
    e("buffer_load_dword v14, v12, s[48:51], s3 offen sc1")
    e("s_add_u32 s28, s28, 1")
    e("s_waitcnt vmcnt(0)")
    e("v_readfirstlane_b32 s30, v14")
    e("s_cmp_eq_u32 s30, 1")
    e("s_cbranch_scc1 L_clrok")
    e("s_cmp_lt_u32 s28, 0x400000")
    e("s_cbranch_scc1 L_clrslow")
    e("s_branch L_clrok")
    e.label("L_codeend")
    return e.text()

hdr = open("standalone__spectral_fnet__prompt.s.ref").read().split("; Override")[0]
out = hdr
out += f"; @launch grid=(256,1,1) block=(384,1,1) lds=163840\n"
out += '.amdgcn_target "amdgcn-amd-amdhsa--gfx950"\n.text\n'
out += gen()
out += f'''.section .rodata,"a"
.p2align 6
.amdhsa_kernel {NAME}
  .amdhsa_next_free_vgpr 256
  .amdhsa_next_free_sgpr 102
  .amdhsa_accum_offset 256
  .amdhsa_group_segment_fixed_size 0
  .amdhsa_kernarg_size 64
  .amdhsa_user_sgpr_count 2
  .amdhsa_user_sgpr_kernarg_segment_ptr 1
  .amdhsa_system_sgpr_workgroup_id_x 1
.end_amdhsa_kernel
'''
open(sys.argv[1], "w").write(out)
```

```python
import sys
def opt(name, default):
    for a in sys.argv:
        if a.startswith(f"--{name}="): return type(default)(a.split("=")[1])
    return default
STAMP = '--stamp' in sys.argv
MEMT = 's_memrealtime' if '--rt' in sys.argv else 's_memtime'
SLEEP = opt("sleep", 4)
NPRE = opt("npre", 2)
LOOK = opt("look", 4)
HPB = opt("hpb", 3)
CHKST = opt("chkst", 12)
PERST = opt("perst", 0)
HLATE = opt("hlate", 2)
LPRIO = opt("lprio", 0)
CPRIO = opt("cprio", 0)
OUTF = opt("outf", "")
SKIPH = opt("skiph", 1)
PSUM = opt("psum", 0)
CPF = opt("cpf", 0)
NOB20 = opt("nob20", 0)
ORD = opt("ord", 2)
MAPA = opt("mapa", 0)
M32 = opt("m32", 0)
TLBW = opt("tlbw", 1)
NTC = opt("ntc", 0)
NTX = opt("ntx", 0)

class Em:
    def __init__(self):
        self.lines = []; self.vm = []; self.lg = []; self.nst = 0
    def __call__(self, s): self.lines.append("    " + s)
    def label(self, s): self.lines.append(s + ":")
    def vmem(self, s, tag): self(s); self.vm.append(tag)
    def lds(self, s, tag): self(s); self.lg.append(tag)
    def wait_vm(self, tags):
        idx = [i for i, t in enumerate(self.vm) if t in tags]
        if not idx: return
        n = min(len(self.vm) - 1 - max(idx), 63)
        self(f"s_waitcnt vmcnt({n})")
        self.vm = self.vm[len(self.vm) - n:] if n > 0 else []
    def wait_lg(self, tags):
        idx = [i for i, t in enumerate(self.lg) if t in tags]
        if not idx: return
        n = min(len(self.lg) - 1 - max(idx), 15)
        self(f"s_waitcnt lgkmcnt({n})")
        self.lg = self.lg[len(self.lg) - n:] if n > 0 else []
    def wait_lg_all(self): self("s_waitcnt lgkmcnt(0)"); self.lg = []
    def wait_vm_all(self): self("s_waitcnt vmcnt(0)"); self.vm = []
    def stamp(self):
        if not STAMP: return
        self.nst += 1
        r = 58 + 2*self.nst
        assert r < 84
        self(f"{MEMT} s[{r}:{r+1}]")
    def stamp_flush(self):
        if not STAMP: return
        self("s_memrealtime s[56:57]")
        self("s_waitcnt lgkmcnt(0)")
        self("s_lshl_b32 s50, s2, 3")
        self("s_add_u32 s50, s50, s17")
        self("s_lshl_b32 s50, s50, 8")
        self(f"s_add_u32 s50, s50, {0x1000000}")
        self("v_mov_b32 v1, 0")
        regs = [54, 56] + [58 + 2*i for i in range(1, self.nst+1)]
        for i, r in enumerate(regs):
            self(f"v_mov_b32 v3, s{r}")
            self(f"buffer_store_dword v3, v1, s[32:35], s50 offen offset:{4*i}")
            self("s_nop 1")
        if PERST:
            self("v_mbcnt_lo_u32_b32 v1, -1, 0")
            self("v_lshlrev_b32 v1, 2, v1")
            self("s_mov_b32 exec_lo, 0xffffff")
            self("s_mov_b32 exec_hi, 0")
            self(f"buffer_store_dword v60, v1, s[32:35], s50 offen offset:128")
    def pst(self):
        if not PERST: return
        self(f"{MEMT} s[84:85]")
        self("s_mov_b32 m0, s88")
        self("s_waitcnt lgkmcnt(0)")
        self("v_writelane_b32 v60, s84, m0")
        self("s_add_u32 s88, s88, 1")
    def text(self): return "\n".join(self.lines) + "\n"

SLOT = 32768; XOFF = 16384; NSLOT = 5
HST = 14336
HPOSN = [32768 + n*HST for n in range(9)] + [0, HST] + [32768, 32768 + HST, 32768 + 2*HST]
def hbar(pos):
    a = HPOSN[pos]; b = a + HST - 1
    need = 0
    for sl in range(a // SLOT, b // SLOT + 1):
        last = max(st for st in range(16) if st % NSLOT == sl)
        need = max(need, last + 1)
    return need
NAME = "standalone__spectral_fnet__prompt_kernel"

def ord_tables():
    tabs = []
    for ph in range(4):
        if ORD == 1:
            order = [(t + 4*ph) & 15 for t in range(16)]
        elif ORD == 2:
            lead_t = {0: ph}
            for r in range(1, 4): lead_t[4*(r-1) + 1 + ph] = 4*r + ph
            fq = [4*r + ((ph + d) & 3) for r in range(4) for d in (1, 2, 3)]
            order = []
            for t in range(16):
                order.append(lead_t[t] if t in lead_t else fq.pop(0))
        elif ORD >= 10:
            LT = {
              10: lambda ph: [0, 1, 2+ph, 6+ph],
              11: lambda ph: [0, 1+(ph>>1), 4+ph, 8+ph],
              12: lambda ph: [0, 1+ph, 4+ph, 7+ph],
              13: lambda ph: [0, 2+ph, 6+ph, 10+ph],
              14: lambda ph: [0, 1+ph, 5+ph, 8+ph],
              15: lambda ph: [0, 1, 3+(ph>>1)*2, 6+(ph>>1)*2+(ph&1)],
            }[ORD](ph)
            lead_t = {t_: 4*r + ph for r, t_ in enumerate(LT)}
            fq = [4*r + ((ph + d) & 3) for r in range(4) for d in (1, 2, 3)]
            order = []
            for t in range(16):
                order.append(lead_t[t] if t in lead_t else fq.pop(0))
        elif ORD == 3:
            order = [4*r + ((ph + d) & 3) for r in range(4) for d in range(4)]
        assert sorted(order) == list(range(16))
        v = 0
        for t, s_ in enumerate(order): v |= s_ << (4*t)
        tabs.append(v)
    return tabs
def rot2(e, dst):
    e(f"s_mul_i32 s{dst}, s15, 7")
    e(f"s_add_u32 s{dst}, s{dst}, 1")
    e(f"s_lshr_b32 s{dst}, s{dst}, 1")
    e(f"s_and_b32 s98, s14, 7")
    e(f"s_mul_i32 s98, s98, 7")
    e(f"s_lshr_b32 s98, s98, 2")
    e(f"s_add_u32 s{dst}, s{dst}, s98")
    e(f"s_sub_u32 s98, s{dst}, 14")
    e(f"s_cmp_ge_u32 s{dst}, 14")
    e(f"s_cselect_b32 s{dst}, s98, s{dst}")

def gen():
    e = Em()
    e.lines.append(f".globl {NAME}\n.p2align 8\n.type {NAME},@function\n{NAME}:")
    e("s_cmp_ge_u32 s2, 256")
    e("s_cbranch_scc1 L_done")
    e("s_load_dwordx8 s[4:11], s[0:1], 0")
    e("s_load_dwordx8 s[36:43], s[0:1], 32")
    if STAMP: e("s_memrealtime s[54:55]")
    e.stamp()
    e("v_lshrrev_b32 v1, 6, v0")
    e("v_and_b32 v0, 63, v0")
    e("v_readfirstlane_b32 s17, v1")
    e("s_lshr_b32 s13, s2, 3")
    e("s_and_b32 s15, s13, 3")
    e("s_and_b32 s16, s2, 1")
    e("s_bfe_u32 s14, s2, 0x20001")
    e("s_lshl_b32 s14, s14, 3")
    e("s_lshr_b32 s12, s13, 2")
    e("s_add_u32 s14, s14, s12")
    if MAPA:
        e("s_and_b32 s14, s2, 7")
        e("s_lshl_b32 s14, s14, 2")
        e("s_lshr_b32 s12, s13, 3")
        e("s_add_u32 s14, s14, s12")
        e("s_bfe_u32 s16, s13, 0x10002")
    e("s_lshl_b32 s90, s15, 2")
    e("s_and_b32 s12, s15, 2")
    e("s_sub_u32 s90, s90, s12")
    e("v_lshrrev_b32 v3, 4, v0")
    e("v_lshlrev_b32 v2, 4, v0")
    e("s_mov_b32 s34, 0x10000000"); e("s_mov_b32 s35, 0x00020000")
    e("s_cmp_lt_u32 s17, 4")
    e("s_cbranch_scc1 L_compute")
    if LPRIO: e(f"s_setprio {LPRIO}")
    e("s_sub_u32 s18, s17, 4")
    e("v_lshrrev_b32 v20, 3, v0")
    e("v_and_b32 v21, 7, v0")
    e("v_lshrrev_b32 v22, 1, v20")
    e("v_xor_b32 v23, v22, v21")
    e("v_xor_b32 v24, 4, v23")
    e("v_lshlrev_b32 v25, 12, v20")
    e("v_lshl_add_u32 v23, v23, 4, v25")
    e("v_lshl_add_u32 v24, v24, 4, v25")
    for q in range(8):
        e(f"v_add_u32 v{4+q}, {8*q*4096 - 1024*(q&3)}, v{24 if q & 1 else 23}")
    e("v_and_b32 v22, 15, v0")
    e("v_lshlrev_b32 v23, 2, v3")
    e("v_xor_b32 v22, v22, v23")
    e("v_xor_b32 v24, 2, v22")
    e("v_mul_u32_u24 v23, 896, v3")
    e("v_lshl_add_u32 v22, v22, 4, v23")
    e("v_lshl_add_u32 v24, v24, 4, v23")
    for q in range(8):
        e(f"v_add_u32 v{12+q}, {4*q*896 - 1024*(q&3)}, v{24 if (q>>1)&1 else 22}")
    e("s_lshl_b32 s52, s14, 18")
    e("s_lshl_b32 s49, s16, 11")
    e("s_add_u32 s52, s52, s49")
    e("s_lshl_b32 s53, s16, 10")
    e("s_lshl_b32 s50, s18, 5")
    e("s_add_u32 s53, s53, s50")
    e("s_mul_i32 s53, s53, 896")
    e("s_lshl_b32 s50, s90, 6")
    e("s_add_u32 s53, s53, s50")
    if ORD:
        e("s_mov_b32 s94, s52"); e("s_mov_b32 s95, s53")
        e("s_add_u32 s3, s14, s15")
        e("s_and_b32 s3, s3, 3")
        tb = ord_tables()
        e(f"s_mov_b32 s96, {tb[0] & 0xffffffff}"); e(f"s_mov_b32 s97, {tb[0] >> 32}")
        for ph in (1, 2, 3):
            e(f"s_cmp_eq_u32 s3, {ph}")
            e(f"s_cselect_b32 s96, {tb[ph] & 0xffffffff}, s96")
            e(f"s_cselect_b32 s97, {tb[ph] >> 32}, s97")
    e("s_lshl_b32 s50, s18, 13")
    e(f"s_add_u32 s51, s50, {SLOT*NSLOT}")
    e("s_mov_b32 s26, 0x800000"); e("s_mov_b32 s27, 0x00020000")
    e("s_mov_b32 s30, 1835008"); e("s_mov_b32 s31, 0x00020000")
    e("s_mov_b32 s46, 401408"); e("s_mov_b32 s47, 0x00020000")
    e("s_mov_b32 s3, 0")
    e("s_cmp_eq_u32 s18, 1")
    e("s_waitcnt lgkmcnt(0)")
    e("s_cselect_b32 s24, s8, s6")
    e("s_cselect_b32 s25, s9, s7")
    e("s_mov_b32 s28, s4"); e("s_mov_b32 s29, s5")
    e("s_mov_b32 s32, s42"); e("s_mov_b32 s33, s43")
    e("s_mov_b32 s44, s10"); e("s_mov_b32 s45, s11")
    e("s_getpc_b64 s[86:87]")
    e("s_add_u32 s86, s86, L_after0 - . + 4 - 4")
    e.lines.pop(); e.lines.pop()
    e("s_call_b64 s[86:87], L_issue")
    e("s_branch L_lcont")
    e.label("L_issue")
    if ORD:
        e("s_and_b32 s49, s96, 15")
        e("s_lshr_b64 s[96:97], s[96:97], 4")
        e("s_lshl_b32 s52, s49, 7")
        e("s_add_u32 s52, s52, s94")
        e(f"s_mul_i32 s53, s49, {64*896}")
        e("s_add_u32 s53, s53, s95")
    for part in range(2):
        for q in range(8):
            if (q & 3) == 0:
                e(f"s_add_u32 m0, s50, {part*XOFF + q*1024}")
                e("s_nop 0")
            off = f" offset:{1024*(q&3)}"
            if part == 0:
                e(f"buffer_load_dwordx4 v{4+q}, s[24:27], s52 offen{off}{' nt' if NTC else ''} lds")
            else:
                e(f"buffer_load_dwordx4 v{12+q}, s[28:31], s53 offen{off}{' nt' if NTX else ''} lds")
    e("s_add_u32 s52, s52, 128")
    e(f"s_add_u32 s53, s53, {64*896}")
    e(f"s_add_u32 s50, s50, {SLOT}")
    e(f"s_sub_u32 s49, s50, {SLOT*NSLOT}")
    e("s_cmp_ge_u32 s50, s51")
    e("s_cselect_b32 s50, s49, s50")
    e("s_setpc_b64 s[86:87]")
    e.label("L_lcont")
    e("s_call_b64 s[86:87], L_issue")
    e.stamp()
    e("s_lshl_b32 s12, s18, 3")
    e("v_add_u32 v27, s12, v20")
    for n in range(7):
        e(f"v_add_u32 v23, {16*n}, v27")
        e("v_bfe_u32 v24, v23, 1, 3")
        e("v_xor_b32 v24, v24, v21")
        if n < 6:
            e("v_bfe_u32 v25, v23, 2, 2")
            e("v_and_b32 v26, 3, v23")
            e("v_lshl_add_u32 v25, v25, 3, v26")
            e(f"v_add_u32 v23, {32*(n>>1) + 4*(n&1)}, v25")
        e("v_mul_u32_u24 v23, 896, v23")
        e(f"v_lshl_add_u32 v{32+n}, v24, 4, v23")
    e("s_mul_i32 s19, s15, 100352")
    e("s_lshl_b32 s12, s18, 10")
    rot2(e, 91)
    if PERST: e("s_mov_b32 s88, 0")
    if LOOK == 4:
        e("s_waitcnt vmcnt(16)")
        e("s_barrier"); e.pst()
        e("s_call_b64 s[86:87], L_issue")
        e("s_call_b64 s[86:87], L_issue")
        e("s_waitcnt vmcnt(32)")
        e("s_barrier"); e.pst()
        e("s_call_b64 s[86:87], L_issue")
        e("s_call_b64 s[86:87], L_issue")
        e("s_mov_b32 s3, 2")
    elif LOOK == 3:
        e("s_waitcnt vmcnt(16)")
        e("s_barrier"); e.pst()
        e("s_call_b64 s[86:87], L_issue")
        e("s_call_b64 s[86:87], L_issue")
        e("s_mov_b32 s3, 1")
    e.label("L_lloop")
    e(f"s_waitcnt vmcnt({16*(LOOK-1)})")
    e("s_barrier"); e.pst()
    e("s_call_b64 s[86:87], L_issue")
    e("s_add_u32 s3, s3, 1")
    e(f"s_cmp_lt_u32 s3, {16-LOOK}")
    e("s_cbranch_scc1 L_lloop")
    e.vm = [("s", st) for st in range(16-LOOK, 16) for _ in range(16)]
    def hstage(pos):
        e(f"s_add_u32 s92, s12, {HPOSN[pos]}")
        e("s_call_b64 s[86:87], L_hissue")
        e.vm += [("h", pos)]*7
    hn = 0
    for b in range(16-LOOK, 17):
        if b < 16: e.wait_vm({("s", b)})
        e("s_barrier"); e.pst()
        cnt = 0
        while hn < (11 - HLATE) and hbar(hn) <= b and (cnt < HPB or b == 16):
            hstage(hn); hn += 1; cnt += 1
    e.stamp()
    e("s_barrier"); e.pst()
    early = set(("h", p_) for p_ in range(11 - HLATE))
    for p_ in range(11 - HLATE, 11): hstage(p_)
    e.wait_vm(early)
    e.stamp()
    e("s_barrier"); e.pst()
    e.wait_vm_all()
    e("s_barrier"); e.pst()
    hstage(11); hstage(12); hstage(13)
    e.wait_vm_all()
    e("s_barrier"); e.pst()
    if not NOB20: e("s_barrier"); e.pst()
    e("s_barrier"); e.pst()
    e("s_branch L_end")
    e.label("L_hissue")
    e("s_sub_u32 s53, s91, 7")
    e("s_cmp_ge_u32 s91, 7")
    e("s_cselect_b32 s52, s53, s91")
    e("s_cselect_b32 s44, s36, s10")
    e("s_cselect_b32 s45, s37, s11")
    e("s_lshl_b32 s52, s52, 7")
    e("s_add_u32 s52, s52, s19")
    for n in range(7):
        e(f"s_add_u32 m0, s92, {n*2048}")
        e("s_nop 0")
        e(f"buffer_load_dwordx4 v{32+n}, s[44:47], s52 offen lds")
    e("s_add_u32 s91, s91, 1")
    e("s_cmp_ge_u32 s91, 14")
    e("s_cselect_b32 s91, 0, s91")
    e("s_setpc_b64 s[86:87]")
    nst_l = e.nst
    e.label("L_compute")
    e.vm = []; e.lg = []
    e.nst = 1
    if CPRIO: e(f"s_setprio {CPRIO}")
    if CPF:
        e("s_getpc_b64 s[26:27]")
        e.label("L_pcref")
        e(f"s_sub_u32 s26, s26, L_pcref - {NAME}")
        e("s_subb_u32 s27, s27, 0")
        e("s_lshl_b32 s12, s17, 13")
        e("v_lshlrev_b32 v45, 7, v0")
        e("v_add_u32 v45, s12, v45")
        e(f"v_min_u32 v45, L_codeend - {NAME} - 4, v45")
        e("s_cmp_ge_u32 s17, 2")
        e("s_cbranch_scc1 L_nocpf")
        if CPF == 2:
            e("s_cmp_ge_u32 s13, 1")
            e("s_cbranch_scc1 L_nocpf")
        e("global_load_dword v46, v45, s[26:27]")
        e.label("L_nocpf")
    e("s_lshr_b32 s18, s17, 1")
    e("s_and_b32 s19, s17, 1")
    e("s_lshl_b32 s24, s16, 1")
    e("s_add_u32 s24, s24, s18")
    e("s_mul_i32 s24, s24, 56")
    e("s_add_u32 s24, s24, s90")
    e("s_lshl_b32 s12, s19, 1")
    e("s_add_u32 s24, s24, s12")
    e("s_lshl_b32 s12, s14, 8")
    e("s_add_u32 s24, s24, s12")
    e("s_lshl_b32 s24, s24, 10")
    e("s_add_u32 s25, s24, 1024")
    e("s_lshl_b32 s12, s15, 1")
    e("s_add_u32 s12, s12, s19")
    e("s_cmp_eq_u32 s12, 4")
    e("s_cselect_b32 s24, s25, s24")
    e("s_cselect_b32 s31, 4, 0")
    e("s_sub_u32 s12, s12, 3")
    e("s_cmp_lt_u32 s12, 2")
    e("s_cselect_b32 s25, 0x7f000000, s25")
    e("s_cselect_b32 s89, 1, 0")
    for u in range(4):
        e(f"v_add_u32 v{40+u}, {u*14336}, v2")
    e("v_mov_b64 v[14:15], 0")
    e("v_mov_b32 v12, 0")
    e("v_mov_b32 v13, 1")
    e("s_mov_b32 s50, 256"); e("s_mov_b32 s51, 0x00020000")
    e("s_mov_b32 s22, 1835008"); e("s_mov_b32 s23, 0x00020000")
    e("s_lshl_b32 s52, s14, 18")
    e(f"s_add_u32 s52, s52, 229376")
    e("s_lshl_b32 s53, s16, 2")
    e("s_add_u32 s53, s53, s15")
    e("s_waitcnt lgkmcnt(0)")
    e("s_mov_b32 s32, s42"); e("s_mov_b32 s33, s43")
    e("s_mov_b32 s20, s38"); e("s_mov_b32 s21, s39")
    e("s_mov_b32 s48, s40"); e("s_mov_b32 s49, s41")
    e("s_or_b32 s12, s53, s17")
    e("s_cmp_lg_u32 s12, 0")
    e("s_cbranch_scc1 L_noclear")
    e("s_mov_b64 exec, 1")
    e("buffer_store_dwordx2 v[14:15], v12, s[32:35], s52 offen sc1")
    e("s_waitcnt vmcnt(0)")
    e("s_lshl_b32 s12, s14, 2")
    e("buffer_store_dword v13, v12, s[48:51], s12 offen sc1")
    e("s_mov_b64 exec, -1")
    e.label("L_noclear")
    e("s_add_u32 s53, s53, s52")
    if TLBW:
        e("s_cmp_lg_u32 s17, 1")
        e("s_cbranch_scc1 L_tw2")
        e("s_mov_b64 exec, 1")
        e("s_add_u32 s12, s52, 256")
        e("buffer_load_dword v47, v12, s[32:35], s12 offen sc1")
        e("s_mov_b64 exec, -1")
        e.label("L_tw2")
        e("s_cmp_lg_u32 s17, 2")
        e("s_cbranch_scc1 L_tw3")
        e("s_mov_b64 exec, 1")
        e("s_mul_i32 s12, s14, 57344")
        e("buffer_load_dword v46, v12, s[20:23], s12 offen sc1")
        e("s_mov_b64 exec, -1")
        e.label("L_tw3")
        e("s_cmp_lg_u32 s17, 3")
        e("s_cbranch_scc1 L_tw4")
        if TLBW != 2:
            e("s_mov_b64 exec, 1")
            e("global_load_dword v46, v12, s[10:11]")
            e("global_load_dword v47, v12, s[36:37]")
        else:
            e("s_mov_b64 exec, 0xf")
            e("s_mul_i32 s12, s15, 100352")
            e("v_lshlrev_b32 v45, 15, v0")
            e("v_add_u32 v45, s12, v45")
            e("global_load_dword v46, v45, s[10:11]")
            e("global_load_dword v47, v45, s[36:37]")
        e("s_mov_b64 exec, -1")
        e.label("L_tw4")
        if TLBW == 3:
            e("s_load_dword s99, s[40:41], 128")
        if TLBW == 2:
            e("s_cmp_lg_u32 s17, 0")
            e("s_cbranch_scc1 L_tw5")
            e("s_mov_b32 exec_hi, 0")
            e("s_mul_i32 s12, s16, 917504")
            e("v_mul_u32_u24 v45, 28672, v0")
            e("v_add_u32 v45, s12, v45")
            e("global_load_dword v46, v45, s[4:5]")
            e("s_mov_b64 exec, -1")
            e.label("L_tw5")
    AB = 16
    AC = 22
    e("v_and_b32 v5, 15, v0")
    e("v_lshrrev_b32 v12, 1, v5")
    e("v_xor_b32 v12, v12, v3")
    e("v_lshlrev_b32 v12, 4, v12")
    e("v_lshl_add_u32 v12, v5, 7, v12")
    e("s_lshl_b32 s12, s18, 13")
    e(f"v_add_u32 v{AB}, s12, v12")
    e(f"v_xor_b32 v{AB+1}, 64, v{AB}")
    e("v_bfe_u32 v5, v0, 2, 2")
    e("v_lshl_add_u32 v12, v3, 3, v5")
    e("v_lshlrev_b32 v12, 8, v12")
    e(f"v_add_u32 v12, {XOFF}, v12")
    e("v_and_b32 v13, 3, v0")
    e("v_lshrrev_b32 v14, 1, v13")
    e("v_xor_b32 v14, v14, v13")
    e("v_and_b32 v14, 1, v14")
    e("v_lshl_add_u32 v12, v14, 3, v12")
    e("v_and_b32 v14, 1, v3")
    e("v_lshlrev_b32 v14, 1, v14")
    e("v_xor_b32 v13, v13, v14")
    e("v_lshl_add_u32 v13, v5, 2, v13")
    e("s_lshl_b32 s12, s19, 3")
    e("s_xor_b32 s12, s12, s31")
    e("v_xor_b32 v13, s12, v13")
    for pp in range(2):
        e(f"v_xor_b32 v14, {4*pp}, v13")
        e(f"v_lshl_add_u32 v{AB+2+pp}, v14, 4, v12")
        e(f"v_xor_b32 v{AB+4+pp}, 8, v{AB+2+pp}")
    for t in range(6):
        e(f"v_mov_b32 v{AC+t}, v{AB+t}")
    ACC = 48; FR = 112
    def acc(T, u): return ACC + (T*4+u)*4
    def xf(buf, T): return FR + buf*32 + T*4
    def cf(buf, u): return FR + buf*32 + 16 + u*4
    for r in range(0, 64, 2):
        e(f"v_mov_b64 v[{ACC+r}:{ACC+r+1}], 0")
    e("v_mov_b32 v12, 0")
    e("v_mov_b32 v13, 1")
    e("s_mov_b32 vcc_lo, 0xffff0000")
    e("s_mov_b32 vcc_hi, 0x0000ffff")
    e("s_cmp_eq_u32 s18, 1")
    e("s_cselect_b32 s12, 0x80008000, 0")
    def reads(kk, NT=4):
        buf = kk
        out = []
        def xr(T):
            reg = AC + 2 + 2*(T & 1) + (T >> 1)
            for h in range(2):
                off = kk*8192 + h*1024
                d = xf(buf, T) + 2*h
                out.append((f"ds_read_b64_tr_b16 v[{d}:{d+1}], v{reg} offset:{off}", ("f", kk, "x", T)))
        def cr(u):
            d = cf(buf, u)
            out.append((f"ds_read_b128 v[{d}:{d+3}], v{AC+kk} offset:{u*2048}", ("f", kk, "c", u)))
        xr(0)
        for u in range(4): cr(u)
        for T in range(1, NT): xr(T)
        return out
    e("s_mov_b32 s28, 0")
    e("s_mov_b32 s29, 0")
    e.stamp()
    e("s_barrier")
    e.stamp()
    def mainloop(NT, lab):
        e.lg = []
        for s_, tag in reads(0, NT): e.lds(s_, tag)
        e.label(lab)
        for kk in range(2):
            nxt = reads(1 - kk, NT)
            ri = 0; mi = 0
            BARPOS = 3 if kk == 1 else 0
            nsl = NT*4
            for T in range(NT):
                for u in range(4):
                    e.wait_lg({("f", kk, "x", T), ("f", kk, "c", u)})
                    x = xf(kk, T); c = cf(kk, u); a = acc(T, u)
                    if not M32:
                        e(f"v_mfma_f32_16x16x32_bf16 v[{a}:{a+3}], v[{x}:{x+3}], v[{c}:{c+3}], v[{a}:{a+3}]")
                    elif u & 1:
                        a32 = ACC + ((T >> 1)*2 + (u >> 1))*16
                        e(f"v_mfma_f32_32x32x16_bf16 v[{a32}:{a32+15}], v[{x}:{x+3}], v[{c}:{c+3}], v[{a32}:{a32+15}]")
                    if kk == 1 and mi < 3:
                        if mi == 0:
                            e(f"s_add_u32 s29, s29, {SLOT}")
                            e(f"s_cmp_ge_u32 s29, {SLOT*NSLOT}")
                            e("s_cselect_b32 s29, 0, s29")
                        for t in range(2*mi, 2*mi+2):
                            e(f"v_add_u32 v{AC+t}, s29, v{AB+t}")
                    if kk == 1 and mi == BARPOS:
                        e.wait_lg_all()
                        e("s_barrier")
                    if mi >= BARPOS and ri < len(nxt):
                        n_ = 2 if ((kk == 1 and mi < BARPOS + 2) or NT == 2) else 1
                        for _ in range(n_):
                            if ri < len(nxt):
                                e.lds(*nxt[ri]); ri += 1
                    mi += 1
            assert ri == len(nxt)
        e("s_add_u32 s28, s28, 1")
        e("s_cmp_lt_u32 s28, 16")
        e(f"s_cbranch_scc1 {lab}")
    if SKIPH:
        e("s_cmp_eq_u32 s89, 1")
        e("s_cbranch_scc0 L_full")
        mainloop(2, "L_mainh")
        e("s_branch L_mdone")
        e.label("L_full")
    mainloop(4, "L_main")
    e.label("L_mdone")
    e.stamp()
    e("s_lshl_b32 s3, s14, 2")
    e("s_load_dword s30, s[40:41], s3")
    e("s_nop 2")
    tmp = 192
    for u in range(4):
        for pp in range(2):
            t = tmp; tmp += 8
            a = acc(2*pp, u); b = acc(2*pp+1, u)
            e(f"v_cvt_pk_bf16_f32 v{t}, v{a}, v{a+1}")
            e(f"v_cvt_pk_bf16_f32 v{t+1}, v{a+2}, v{a+3}")
            e(f"v_cvt_pk_bf16_f32 v{t+2}, v{b}, v{b+1}")
            e(f"v_cvt_pk_bf16_f32 v{t+3}, v{b+2}, v{b+3}")
            for r in range(4): e(f"v_xor_b32 v{t+r}, s12, v{t+r}")
            e(f"v_cndmask_b32 v{t+4}, v{t}, v{t+2}, vcc")
            e(f"v_cndmask_b32 v{t+5}, v{t+1}, v{t+3}, vcc")
            e(f"v_cndmask_b32 v{t+6}, v{t+2}, v{t}, vcc")
            e(f"v_cndmask_b32 v{t+7}, v{t+3}, v{t+1}, vcc")
            e(f"buffer_store_dwordx4 v[{t+4}:{t+7}], v{40+u}, s[32:35], s{24+pp} offen sc1")
    e.stamp()
    A2 = 32; PF = 88; HF = 200
    def acc2(T, u): return A2 + (T*2+u)*4
    e("s_waitcnt lgkmcnt(0)")
    e.lg = []
    e("v_and_b32 v4, 15, v0")
    e("v_lshrrev_b32 v5, 1, v4")
    e("s_lshl_b32 s24, s19, 2")
    e("v_add_u32 v6, s24, v3")
    e("v_xor_b32 v5, v5, v6")
    e("v_lshlrev_b32 v5, 4, v5")
    e("v_lshl_add_u32 v5, v4, 7, v5")
    e("s_lshl_b32 s24, s14, 18")
    e("s_mul_i32 s25, s16, 28672")
    e("s_add_u32 s24, s24, s25")
    e("s_lshl_b32 s25, s19, 10")
    e("s_add_u32 s24, s24, s25")
    rot2(e, 26)
    e("s_add_u32 s26, s26, s18")
    for idx in range(7):
        e(f"s_add_u32 s25, s26, {2*idx}")
        e("s_sub_u32 s27, s25, 14")
        e("s_cmp_ge_u32 s25, 14")
        e("s_cselect_b32 s25, s27, s25")
        e("s_sub_u32 s27, s25, 7")
        e("s_cmp_ge_u32 s25, 7")
        e("s_cselect_b32 s25, s27, s25")
        e(f"s_cselect_b32 s27, 57344, 0")
        e("s_lshl_b32 s25, s25, 11")
        e("s_add_u32 s25, s25, s27")
        e(f"s_add_u32 s{91+idx}, s25, s24")
    e("v_mov_b32 v24, v2")
    e("v_add_u32 v25, 14336, v2")
    e(f"v_add_u32 v26, 114688, v2")
    e(f"v_add_u32 v27, {114688+14336}, v2")
    e.vm = [("st",)]*8
    def pload(idx, track=True):
        for kp in range(2):
            for u in range(2):
                r = PF + (idx*4 + kp*2 + u)*4
                s_ = f"buffer_load_dwordx4 v[{r}:{r+3}], v{24+kp*2+u}, s[32:35], s{91+idx} offen sc1"
                if track: e.vmem(s_, ("p", idx))
                else: e(s_)
    e("s_cmp_eq_u32 s18, 1")
    for idx in range(7):
        e(f"s_mov_b32 s24, {HPOSN[2*idx]}")
        e(f"s_cselect_b32 s24, {HPOSN[1+2*idx]}, s24")
        e(f"v_add_u32 v{16+idx}, s24, v5")
    for r in range(0, 56, 2):
        e(f"v_mov_b64 v[{A2+r}:{A2+r+1}], 0")
    e.wait_vm_all()
    e.stamp()
    e("s_barrier")
    e("s_cmp_lg_u32 s17, 0")
    e("s_cbranch_scc1 L_nopoll")
    e("s_mov_b64 exec, 1")
    e("s_cmp_eq_u32 s30, 1")
    e("s_cbranch_scc0 L_clrslow")
    e.label("L_clrok")
    e("buffer_store_byte v13, v12, s[32:35], s53 offen sc1")
    e("s_mov_b32 s28, 0")
    e.label("L_poll")
    e("buffer_load_dwordx2 v[14:15], v12, s[32:35], s52 offen sc1")
    e("s_add_u32 s28, s28, 1")
    e("s_waitcnt vmcnt(0)")
    e("v_and_b32 v14, v14, v15")
    e("s_nop 0")
    e("v_readfirstlane_b32 s12, v14")
    e("s_cmp_eq_u32 s12, 0x01010101")
    e("s_cbranch_scc1 L_pollx")
    if SLEEP: e(f"s_sleep {SLEEP}")
    e("s_cmp_lt_u32 s28, 0x400000")
    e("s_cbranch_scc1 L_poll")
    e.label("L_pollx")
    e("s_mov_b64 exec, -1")
    e.label("L_nopoll")
    e("s_barrier")
    e.stamp()
    for idx in range(NPRE): pload(idx)
    def hreads(idx):
        out = []
        for T in range(7):
            d = HF + (idx & 1)*28 + T*4
            out.append((f"ds_read_b128 v[{d}:{d+3}], v{16+idx} offset:{T*2048}", ("h", idx, T)))
        return out
    if not PSUM:
        for s_, tag in hreads(0): e.lds(s_, tag)
        slow = []
        for idx in range(7):
            if idx == 1:
                e.wait_lg_all()
                e("s_barrier")
            if idx == 4:
                e("s_barrier")
            e.wait_vm({("p", idx)})
            if idx == 0: e.stamp()
            if idx + NPRE < 7: pload(idx + NPRE)
            nxt = hreads(idx+1) if idx < 6 else []
            ri = 0
            for T in range(7):
                e.wait_lg({("h", idx, T)})
                h = HF + (idx & 1)*28 + T*4
                for kp in range(2):
                    for u in range(2):
                        p = PF + (idx*4 + kp*2 + u)*4; a = acc2(T, u)
                        e(f"v_mfma_f32_16x16x32_bf16 v[{a}:{a+3}], v[{h}:{h+3}], v[{p}:{p+3}], v[{a}:{a+3}]")
                        if ri < len(nxt) and kp == 1 and u == 0:
                            e.lds(*nxt[ri]); ri += 1
            while ri < len(nxt):
                e.lds(*nxt[ri]); ri += 1
    else:
        for s_, tag in hreads(0): e.lds(s_, tag)
        e("s_mov_b32 s24, 0x05040100")
        e("s_mov_b32 s25, 0x07060302")
        e("v_mov_b32 v28, 0x3f803f80")
        def sums(idx):
            out = []
            for u in range(2):
                for r in range(4):
                    A = PF + (idx*4 + u)*4 + r; B = PF + (idx*4 + 2 + u)*4 + r
                    t0 = 4 + 2*(r & 1); t1 = t0 + 1
                    if PSUM == 1:
                        out.append(f"v_perm_b32 v{t0}, v{B}, v{A}, s24")
                        out.append(f"v_perm_b32 v{t1}, v{B}, v{A}, s25")
                        out.append(f"v_dot2_f32_bf16 v{t0}, v{t0}, v28, 0")
                        out.append(f"v_dot2_f32_bf16 v{t1}, v{t1}, v28, 0")
                        out.append("s_nop 2")
                        out.append(f"v_cvt_pk_bf16_f32 v{A}, v{t0}, v{t1}")
                    else:
                        t2 = 8 + 2*(r & 1); t3 = t2 + 1
                        out.append(f"v_lshlrev_b32 v{t0}, 16, v{A}")
                        out.append(f"v_and_b32 v{t1}, 0xffff0000, v{A}")
                        out.append(f"v_lshlrev_b32 v{t2}, 16, v{B}")
                        out.append(f"v_and_b32 v{t3}, 0xffff0000, v{B}")
                        out.append(f"v_add_f32 v{t0}, v{t0}, v{t2}")
                        out.append(f"v_add_f32 v{t1}, v{t1}, v{t3}")
                        out.append(f"v_cvt_pk_bf16_f32 v{A}, v{t0}, v{t1}")
            return out
        e.wait_vm({("p", 0)})
        e.stamp()
        if NPRE < 7: pload(NPRE)
        for s_ in sums(0): e(s_)
        for idx in range(7):
            if idx == 1:
                e.wait_lg_all()
                e("s_barrier")
            if idx == 4:
                e("s_barrier")
            va = []
            if idx < 6:
                e.wait_vm({("p", idx+1)})
                if idx + 1 + NPRE < 7: pload(idx + 1 + NPRE)
                va = sums(idx+1)
            else:
                e("s_nop 1")
            nxt = hreads(idx+1) if idx < 6 else []
            ri = 0; vi = 0
            per = -(-len(va) // 14)
            for T in range(7):
                e.wait_lg({("h", idx, T)})
                h = HF + (idx & 1)*28 + T*4
                for u in range(2):
                    p = PF + (idx*4 + u)*4; a_ = acc2(T, u)
                    e(f"v_mfma_f32_16x16x32_bf16 v[{a_}:{a_+3}], v[{h}:{h+3}], v[{p}:{p+3}], v[{a_}:{a_+3}]")
                    if ri < len(nxt) and u == 0:
                        e.lds(*nxt[ri]); ri += 1
                    for _ in range(per):
                        if vi < len(va):
                            e(va[vi]); vi += 1
            while ri < len(nxt):
                e.lds(*nxt[ri]); ri += 1
            while vi < len(va):
                e(va[vi]); vi += 1
            e("s_nop 1")
    e.vm = []; e.lg = []
    e.stamp()
    RS = 81920
    e("s_mul_i32 s48, s17, 14336")
    e(f"s_add_u32 s48, s48, {RS}")
    e("v_add_u32 v4, s48, v2")
    e("v_and_b32 v5, 15, v0")
    e("v_mul_u32_u24 v5, 896, v5")
    e("v_lshl_add_u32 v7, v3, 4, v5")
    e("v_lshl_add_u32 v8, v3, 3, v5")
    e("s_lshl_b32 s48, s14, 1")
    e("s_add_u32 s48, s48, s16")
    e("s_mul_i32 s48, s48, 28672")
    e("s_mul_i32 s49, s15, 224")
    e("s_add_u32 s48, s48, s49")
    for ii in range(2):
        e("s_lshl_b32 s24, s17, 1")
        if ii: e("s_add_u32 s24, s24, 1")
        e("s_sub_u32 s25, s24, 3")
        e("s_cmp_ge_u32 s24, 3")
        e("s_cselect_b32 s24, s25, s24")
        e("s_cselect_b32 s25, 1, 0")
        e("s_lshl_b32 s26, s24, 12")
        e("s_lshl_b32 s27, s25, 10")
        e("s_add_u32 s26, s26, s27")
        e(f"s_add_u32 s26, s26, {RS}")
        e(f"v_add_u32 v{10+ii}, s26, v2")
        e("s_mul_i32 s25, s25, 14336")
        e("s_lshl_b32 s24, s24, 6")
        e("s_add_u32 s24, s24, s25")
        e(f"s_add_u32 s{91+ii}, s24, s48")
    if not NOB20: e("s_barrier")
    for T in range(7):
        for u in range(2):
            a = acc2(T, u)
            e(f"ds_write_b128 v4, v[{a}:{a+3}] offset:{(T*2+u)*1024}")
    e("s_waitcnt lgkmcnt(0)")
    e("s_barrier")
    e("s_cmp_eq_u32 s17, 3")
    e("s_cbranch_scc1 L_fin3")
    def red(r, o):
        for q in range(4):
            e(f"v_add_f32 v{r+q}, v{r+q}, v{r+4+q}")
            e(f"v_add_f32 v{r+8+q}, v{r+8+q}, v{r+12+q}")
        for q in range(4):
            e(f"v_add_f32 v{r+q}, v{r+q}, v{r+8+q}")
        e(f"v_cvt_pk_bf16_f32 v{o}, v{r}, v{r+1}")
        e(f"v_cvt_pk_bf16_f32 v{o+1}, v{r+2}, v{r+3}")
    for ii in range(2):
        for ti in range(2):
            for ww in range(4):
                r = 88 + ii*32 + (ti*4+ww)*4
                e(f"ds_read_b128 v[{r}:{r+3}], v{10+ii} offset:{ww*14336 + ti*2048}")
    for ii in range(2):
        e(f"s_waitcnt lgkmcnt({8 if ii == 0 else 0})")
        for ti in range(2):
            red(88 + ii*32 + ti*16, 160 + ii*4 + 2*ti)
        e(f"buffer_store_dwordx4 v[{160+ii*4}:{163+ii*4}], v7, s[20:23], s{91+ii} offen {OUTF}")
    e("s_branch L_end")
    e.label("L_fin3")
    e(f"v_add_u32 v10, {RS + 12*1024}, v2")
    e("s_add_u32 s49, s48, 14336")
    for u in range(2):
        for ww in range(4):
            r = 88 + u*16 + ww*4
            e(f"ds_read_b128 v[{r}:{r+3}], v10 offset:{ww*14336 + u*1024}")
    e("s_waitcnt lgkmcnt(0)")
    for u in range(2):
        red(88 + u*16, 160 + 2*u)
        e(f"buffer_store_dwordx2 v[{160+2*u}:{161+2*u}], v8, s[20:23], s{48+u} offen offset:192 {OUTF}")
    e.label("L_end")
    if STAMP:
        e("s_waitcnt vmcnt(0)")
        e.nst = max(nst_l, e.nst)
        e.stamp()
        e.stamp_flush()
    e.label("L_done")
    e("s_endpgm")
    e.label("L_clrslow")
    e("s_sleep 8")
    e("buffer_load_dword v14, v12, s[48:51], s3 offen sc1")
    e("s_add_u32 s28, s28, 1")
    e("s_waitcnt vmcnt(0)")
    e("v_readfirstlane_b32 s30, v14")
    e("s_cmp_eq_u32 s30, 1")
    e("s_cbranch_scc1 L_clrok")
    e("s_cmp_lt_u32 s28, 0x400000")
    e("s_cbranch_scc1 L_clrslow")
    e("s_branch L_clrok")
    e.label("L_codeend")
    return e.text()

hdr = open("standalone__spectral_fnet__prompt.s.ref").read().split("; Override")[0]
out = hdr
out += f"; @launch grid=(256,1,1) block=(384,1,1) lds=163840\n"
out += '.amdgcn_target "amdgcn-amd-amdhsa--gfx950"\n.text\n'
out += gen()
out += f'''.section .rodata,"a"
.p2align 6
.amdhsa_kernel {NAME}
  .amdhsa_next_free_vgpr 256
  .amdhsa_next_free_sgpr 102
  .amdhsa_accum_offset 256
  .amdhsa_group_segment_fixed_size 0
  .amdhsa_kernarg_size 64
  .amdhsa_user_sgpr_count 2
  .amdhsa_user_sgpr_kernarg_segment_ptr 1
  .amdhsa_system_sgpr_workgroup_id_x 1
.end_amdhsa_kernel
'''
open(sys.argv[1], "w").write(out)
```

```python
import sys
def opt(name, default):
    for a in sys.argv:
        if a.startswith(f"--{name}="): return type(default)(a.split("=")[1])
    return default
STAMP = '--stamp' in sys.argv
MEMT = 's_memrealtime' if '--rt' in sys.argv else 's_memtime'
SLEEP = opt("sleep", 4)
NPRE = opt("npre", 2)
LOOK = opt("look", 4)
HPB = opt("hpb", 3)
CHKST = opt("chkst", 12)
PERST = opt("perst", 0)
HLATE = opt("hlate", 2)
LPRIO = opt("lprio", 0)
CPRIO = opt("cprio", 0)
OUTF = opt("outf", "")
SKIPH = opt("skiph", 1)
PSUM = opt("psum", 0)
CPF = opt("cpf", 0)
NOB20 = opt("nob20", 0)
ORD = opt("ord", 2)
MAPA = opt("mapa", 0)
M32 = opt("m32", 0)
TLBW = opt("tlbw", 1)
POLL2 = opt("poll2", 0)
TLATE = opt("tlate", 0)
NTC = opt("ntc", 0)
NTX = opt("ntx", 0)

class Em:
    def __init__(self):
        self.lines = []; self.vm = []; self.lg = []; self.nst = 0
    def __call__(self, s): self.lines.append("    " + s)
    def label(self, s): self.lines.append(s + ":")
    def vmem(self, s, tag): self(s); self.vm.append(tag)
    def lds(self, s, tag): self(s); self.lg.append(tag)
    def wait_vm(self, tags):
        idx = [i for i, t in enumerate(self.vm) if t in tags]
        if not idx: return
        n = min(len(self.vm) - 1 - max(idx), 63)
        self(f"s_waitcnt vmcnt({n})")
        self.vm = self.vm[len(self.vm) - n:] if n > 0 else []
    def wait_lg(self, tags):
        idx = [i for i, t in enumerate(self.lg) if t in tags]
        if not idx: return
        n = min(len(self.lg) - 1 - max(idx), 15)
        self(f"s_waitcnt lgkmcnt({n})")
        self.lg = self.lg[len(self.lg) - n:] if n > 0 else []
    def wait_lg_all(self): self("s_waitcnt lgkmcnt(0)"); self.lg = []
    def wait_vm_all(self): self("s_waitcnt vmcnt(0)"); self.vm = []
    def stamp(self):
        if not STAMP: return
        self.nst += 1
        r = 58 + 2*self.nst
        assert r < 84
        self(f"{MEMT} s[{r}:{r+1}]")
    def stamp_flush(self):
        if not STAMP: return
        self("s_memrealtime s[56:57]")
        self("s_waitcnt lgkmcnt(0)")
        self("s_lshl_b32 s50, s2, 3")
        self("s_add_u32 s50, s50, s17")
        self("s_lshl_b32 s50, s50, 8")
        self(f"s_add_u32 s50, s50, {0x1000000}")
        self("v_mov_b32 v1, 0")
        regs = [54, 56] + [58 + 2*i for i in range(1, self.nst+1)]
        for i, r in enumerate(regs):
            self(f"v_mov_b32 v3, s{r}")
            self(f"buffer_store_dword v3, v1, s[32:35], s50 offen offset:{4*i}")
            self("s_nop 1")
        if PERST:
            self("v_mbcnt_lo_u32_b32 v1, -1, 0")
            self("v_lshlrev_b32 v1, 2, v1")
            self("s_mov_b32 exec_lo, 0xffffff")
            self("s_mov_b32 exec_hi, 0")
            self(f"buffer_store_dword v60, v1, s[32:35], s50 offen offset:128")
    def pst(self):
        if not PERST: return
        self(f"{MEMT} s[84:85]")
        self("s_mov_b32 m0, s88")
        self("s_waitcnt lgkmcnt(0)")
        self("v_writelane_b32 v60, s84, m0")
        self("s_add_u32 s88, s88, 1")
    def text(self): return "\n".join(self.lines) + "\n"

SLOT = 32768; XOFF = 16384; NSLOT = 5
HST = 14336
HPOSN = [32768 + n*HST for n in range(9)] + [0, HST] + [32768, 32768 + HST, 32768 + 2*HST]
def hbar(pos):
    a = HPOSN[pos]; b = a + HST - 1
    need = 0
    for sl in range(a // SLOT, b // SLOT + 1):
        last = max(st for st in range(16) if st % NSLOT == sl)
        need = max(need, last + 1)
    return need
NAME = "standalone__spectral_fnet__prompt_kernel"

def ord_tables():
    tabs = []
    for ph in range(4):
        if ORD == 1:
            order = [(t + 4*ph) & 15 for t in range(16)]
        elif ORD == 2:
            lead_t = {0: ph}
            for r in range(1, 4): lead_t[4*(r-1) + 1 + ph] = 4*r + ph
            fq = [4*r + ((ph + d) & 3) for r in range(4) for d in (1, 2, 3)]
            order = []
            for t in range(16):
                order.append(lead_t[t] if t in lead_t else fq.pop(0))
        elif ORD >= 20:
            LTF = {
              20: lambda ph: [0, 1+ph, 5+ph, 9+ph],
              21: lambda ph: [0, 1+ph, 8-ph, 9+ph],
              22: lambda ph: [0, 4-ph, 5+ph, 12-ph],
              23: lambda ph: [0, 1+ph, 5+((ph+2)&3), 9+ph],
              24: lambda ph: [0, 1+ph, 4+ph, 8+((ph+2)&3)],
              25: lambda ph: [0, 2+(ph>>1), 5+ph, 9+(3-ph)],
            }[ORD]
            lead_t = {t_: 4*r + ph for r, t_ in enumerate(LTF(ph))}
            fq = sorted([(LTF(q)[r], (q - ph) & 3, 4*r + q) for r in range(4) for q in range(4) if q != ph])
            fq = [x_[2] for x_ in fq]
            order = []
            for t in range(16):
                order.append(lead_t[t] if t in lead_t else fq.pop(0))
        elif ORD >= 10:
            LT = {
              10: lambda ph: [0, 1, 2+ph, 6+ph],
              11: lambda ph: [0, 1+(ph>>1), 4+ph, 8+ph],
              12: lambda ph: [0, 1+ph, 4+ph, 7+ph],
              13: lambda ph: [0, 2+ph, 6+ph, 10+ph],
              14: lambda ph: [0, 1+ph, 5+ph, 8+ph],
              15: lambda ph: [0, 1, 3+(ph>>1)*2, 6+(ph>>1)*2+(ph&1)],
            }[ORD](ph)
            lead_t = {t_: 4*r + ph for r, t_ in enumerate(LT)}
            fq = [4*r + ((ph + d) & 3) for r in range(4) for d in (1, 2, 3)]
            order = []
            for t in range(16):
                order.append(lead_t[t] if t in lead_t else fq.pop(0))
        elif ORD == 3:
            order = [4*r + ((ph + d) & 3) for r in range(4) for d in range(4)]
        assert sorted(order) == list(range(16))
        v = 0
        for t, s_ in enumerate(order): v |= s_ << (4*t)
        tabs.append(v)
    return tabs
def rot2(e, dst):
    e(f"s_mul_i32 s{dst}, s15, 7")
    e(f"s_add_u32 s{dst}, s{dst}, 1")
    e(f"s_lshr_b32 s{dst}, s{dst}, 1")
    e(f"s_and_b32 s98, s14, 7")
    e(f"s_mul_i32 s98, s98, 7")
    e(f"s_lshr_b32 s98, s98, 2")
    e(f"s_add_u32 s{dst}, s{dst}, s98")
    e(f"s_sub_u32 s98, s{dst}, 14")
    e(f"s_cmp_ge_u32 s{dst}, 14")
    e(f"s_cselect_b32 s{dst}, s98, s{dst}")

def gen():
    e = Em()
    e.lines.append(f".globl {NAME}\n.p2align 8\n.type {NAME},@function\n{NAME}:")
    e("s_cmp_ge_u32 s2, 256")
    e("s_cbranch_scc1 L_done")
    e("s_load_dwordx8 s[4:11], s[0:1], 0")
    e("s_load_dwordx8 s[36:43], s[0:1], 32")
    if STAMP: e("s_memrealtime s[54:55]")
    e.stamp()
    e("v_lshrrev_b32 v1, 6, v0")
    e("v_and_b32 v0, 63, v0")
    e("v_readfirstlane_b32 s17, v1")
    e("s_lshr_b32 s13, s2, 3")
    e("s_and_b32 s15, s13, 3")
    e("s_and_b32 s16, s2, 1")
    e("s_bfe_u32 s14, s2, 0x20001")
    e("s_lshl_b32 s14, s14, 3")
    e("s_lshr_b32 s12, s13, 2")
    e("s_add_u32 s14, s14, s12")
    if MAPA:
        e("s_and_b32 s14, s2, 7")
        e("s_lshl_b32 s14, s14, 2")
        e("s_lshr_b32 s12, s13, 3")
        e("s_add_u32 s14, s14, s12")
        e("s_bfe_u32 s16, s13, 0x10002")
    e("s_lshl_b32 s90, s15, 2")
    e("s_and_b32 s12, s15, 2")
    e("s_sub_u32 s90, s90, s12")
    e("v_lshrrev_b32 v3, 4, v0")
    e("v_lshlrev_b32 v2, 4, v0")
    e("s_mov_b32 s34, 0x10000000"); e("s_mov_b32 s35, 0x00020000")
    e("s_cmp_lt_u32 s17, 4")
    e("s_cbranch_scc1 L_compute")
    if LPRIO: e(f"s_setprio {LPRIO}")
    e("s_sub_u32 s18, s17, 4")
    e("v_lshrrev_b32 v20, 3, v0")
    e("v_and_b32 v21, 7, v0")
    e("v_lshrrev_b32 v22, 1, v20")
    e("v_xor_b32 v23, v22, v21")
    e("v_xor_b32 v24, 4, v23")
    e("v_lshlrev_b32 v25, 12, v20")
    e("v_lshl_add_u32 v23, v23, 4, v25")
    e("v_lshl_add_u32 v24, v24, 4, v25")
    for q in range(8):
        e(f"v_add_u32 v{4+q}, {8*q*4096 - 1024*(q&3)}, v{24 if q & 1 else 23}")
    e("v_and_b32 v22, 15, v0")
    e("v_lshlrev_b32 v23, 2, v3")
    e("v_xor_b32 v22, v22, v23")
    e("v_xor_b32 v24, 2, v22")
    e("v_mul_u32_u24 v23, 896, v3")
    e("v_lshl_add_u32 v22, v22, 4, v23")
    e("v_lshl_add_u32 v24, v24, 4, v23")
    for q in range(8):
        e(f"v_add_u32 v{12+q}, {4*q*896 - 1024*(q&3)}, v{24 if (q>>1)&1 else 22}")
    e("s_lshl_b32 s52, s14, 18")
    e("s_lshl_b32 s49, s16, 11")
    e("s_add_u32 s52, s52, s49")
    e("s_lshl_b32 s53, s16, 10")
    e("s_lshl_b32 s50, s18, 5")
    e("s_add_u32 s53, s53, s50")
    e("s_mul_i32 s53, s53, 896")
    e("s_lshl_b32 s50, s90, 6")
    e("s_add_u32 s53, s53, s50")
    if ORD:
        e("s_mov_b32 s94, s52"); e("s_mov_b32 s95, s53")
        e("s_add_u32 s3, s14, s15")
        e("s_and_b32 s3, s3, 3")
        tb = ord_tables()
        e(f"s_mov_b32 s96, {tb[0] & 0xffffffff}"); e(f"s_mov_b32 s97, {tb[0] >> 32}")
        for ph in (1, 2, 3):
            e(f"s_cmp_eq_u32 s3, {ph}")
            e(f"s_cselect_b32 s96, {tb[ph] & 0xffffffff}, s96")
            e(f"s_cselect_b32 s97, {tb[ph] >> 32}, s97")
    e("s_lshl_b32 s50, s18, 13")
    e(f"s_add_u32 s51, s50, {SLOT*NSLOT}")
    e("s_mov_b32 s26, 0x800000"); e("s_mov_b32 s27, 0x00020000")
    e("s_mov_b32 s30, 1835008"); e("s_mov_b32 s31, 0x00020000")
    e("s_mov_b32 s46, 401408"); e("s_mov_b32 s47, 0x00020000")
    e("s_mov_b32 s3, 0")
    e("s_cmp_eq_u32 s18, 1")
    e("s_waitcnt lgkmcnt(0)")
    e("s_cselect_b32 s24, s8, s6")
    e("s_cselect_b32 s25, s9, s7")
    e("s_mov_b32 s28, s4"); e("s_mov_b32 s29, s5")
    e("s_mov_b32 s32, s42"); e("s_mov_b32 s33, s43")
    e("s_mov_b32 s44, s10"); e("s_mov_b32 s45, s11")
    e("s_getpc_b64 s[86:87]")
    e("s_add_u32 s86, s86, L_after0 - . + 4 - 4")
    e.lines.pop(); e.lines.pop()
    e("s_call_b64 s[86:87], L_issue")
    e("s_branch L_lcont")
    e.label("L_issue")
    if ORD:
        e("s_and_b32 s49, s96, 15")
        e("s_lshr_b64 s[96:97], s[96:97], 4")
        e("s_lshl_b32 s52, s49, 7")
        e("s_add_u32 s52, s52, s94")
        e(f"s_mul_i32 s53, s49, {64*896}")
        e("s_add_u32 s53, s53, s95")
    for part in range(2):
        for q in range(8):
            if (q & 3) == 0:
                e(f"s_add_u32 m0, s50, {part*XOFF + q*1024}")
                e("s_nop 0")
            off = f" offset:{1024*(q&3)}"
            if part == 0:
                e(f"buffer_load_dwordx4 v{4+q}, s[24:27], s52 offen{off}{' nt' if NTC else ''} lds")
            else:
                e(f"buffer_load_dwordx4 v{12+q}, s[28:31], s53 offen{off}{' nt' if NTX else ''} lds")
    e("s_add_u32 s52, s52, 128")
    e(f"s_add_u32 s53, s53, {64*896}")
    e(f"s_add_u32 s50, s50, {SLOT}")
    e(f"s_sub_u32 s49, s50, {SLOT*NSLOT}")
    e("s_cmp_ge_u32 s50, s51")
    e("s_cselect_b32 s50, s49, s50")
    e("s_setpc_b64 s[86:87]")
    e.label("L_lcont")
    e("s_call_b64 s[86:87], L_issue")
    e.stamp()
    e("s_lshl_b32 s12, s18, 3")
    e("v_add_u32 v27, s12, v20")
    for n in range(7):
        e(f"v_add_u32 v23, {16*n}, v27")
        e("v_bfe_u32 v24, v23, 1, 3")
        e("v_xor_b32 v24, v24, v21")
        if n < 6:
            e("v_bfe_u32 v25, v23, 2, 2")
            e("v_and_b32 v26, 3, v23")
            e("v_lshl_add_u32 v25, v25, 3, v26")
            e(f"v_add_u32 v23, {32*(n>>1) + 4*(n&1)}, v25")
        e("v_mul_u32_u24 v23, 896, v23")
        e(f"v_lshl_add_u32 v{32+n}, v24, 4, v23")
    e("s_mul_i32 s19, s15, 100352")
    e("s_lshl_b32 s12, s18, 10")
    rot2(e, 91)
    if PERST: e("s_mov_b32 s88, 0")
    if LOOK == 4:
        e("s_waitcnt vmcnt(16)")
        e("s_barrier"); e.pst()
        e("s_call_b64 s[86:87], L_issue")
        e("s_call_b64 s[86:87], L_issue")
        e("s_waitcnt vmcnt(32)")
        e("s_barrier"); e.pst()
        e("s_call_b64 s[86:87], L_issue")
        e("s_call_b64 s[86:87], L_issue")
        e("s_mov_b32 s3, 2")
    elif LOOK == 3:
        e("s_waitcnt vmcnt(16)")
        e("s_barrier"); e.pst()
        e("s_call_b64 s[86:87], L_issue")
        e("s_call_b64 s[86:87], L_issue")
        e("s_mov_b32 s3, 1")
    e.label("L_lloop")
    e(f"s_waitcnt vmcnt({16*(LOOK-1)})")
    e("s_barrier"); e.pst()
    e("s_call_b64 s[86:87], L_issue")
    e("s_add_u32 s3, s3, 1")
    e(f"s_cmp_lt_u32 s3, {16-LOOK}")
    e("s_cbranch_scc1 L_lloop")
    e.vm = [("s", st) for st in range(16-LOOK, 16) for _ in range(16)]
    def hstage(pos):
        e(f"s_add_u32 s92, s12, {HPOSN[pos]}")
        e("s_call_b64 s[86:87], L_hissue")
        e.vm += [("h", pos)]*7
    hn = 0
    for b in range(16-LOOK, 17):
        if b < 16: e.wait_vm({("s", b)})
        e("s_barrier"); e.pst()
        cnt = 0
        while hn < (11 - HLATE) and hbar(hn) <= b and (cnt < HPB or b == 16):
            hstage(hn); hn += 1; cnt += 1
    e.stamp()
    e("s_barrier"); e.pst()
    early = set(("h", p_) for p_ in range(11 - HLATE))
    for p_ in range(11 - HLATE, 11): hstage(p_)
    e.wait_vm(early)
    e.stamp()
    e("s_barrier"); e.pst()
    e.wait_vm_all()
    e("s_barrier"); e.pst()
    hstage(11); hstage(12); hstage(13)
    e.wait_vm_all()
    e("s_barrier"); e.pst()
    if not NOB20: e("s_barrier"); e.pst()
    e("s_barrier"); e.pst()
    e("s_branch L_end")
    e.label("L_hissue")
    e("s_sub_u32 s53, s91, 7")
    e("s_cmp_ge_u32 s91, 7")
    e("s_cselect_b32 s52, s53, s91")
    e("s_cselect_b32 s44, s36, s10")
    e("s_cselect_b32 s45, s37, s11")
    e("s_lshl_b32 s52, s52, 7")
    e("s_add_u32 s52, s52, s19")
    for n in range(7):
        e(f"s_add_u32 m0, s92, {n*2048}")
        e("s_nop 0")
        e(f"buffer_load_dwordx4 v{32+n}, s[44:47], s52 offen lds")
    e("s_add_u32 s91, s91, 1")
    e("s_cmp_ge_u32 s91, 14")
    e("s_cselect_b32 s91, 0, s91")
    e("s_setpc_b64 s[86:87]")
    nst_l = e.nst
    e.label("L_compute")
    e.vm = []; e.lg = []
    e.nst = 1
    if CPRIO: e(f"s_setprio {CPRIO}")
    if CPF:
        e("s_getpc_b64 s[26:27]")
        e.label("L_pcref")
        e(f"s_sub_u32 s26, s26, L_pcref - {NAME}")
        e("s_subb_u32 s27, s27, 0")
        e("s_lshl_b32 s12, s17, 13")
        e("v_lshlrev_b32 v45, 7, v0")
        e("v_add_u32 v45, s12, v45")
        e(f"v_min_u32 v45, L_codeend - {NAME} - 4, v45")
        e("s_cmp_ge_u32 s17, 2")
        e("s_cbranch_scc1 L_nocpf")
        if CPF == 2:
            e("s_cmp_ge_u32 s13, 1")
            e("s_cbranch_scc1 L_nocpf")
        e("global_load_dword v46, v45, s[26:27]")
        e.label("L_nocpf")
    e("s_lshr_b32 s18, s17, 1")
    e("s_and_b32 s19, s17, 1")
    e("s_lshl_b32 s24, s16, 1")
    e("s_add_u32 s24, s24, s18")
    e("s_mul_i32 s24, s24, 56")
    e("s_add_u32 s24, s24, s90")
    e("s_lshl_b32 s12, s19, 1")
    e("s_add_u32 s24, s24, s12")
    e("s_lshl_b32 s12, s14, 8")
    e("s_add_u32 s24, s24, s12")
    e("s_lshl_b32 s24, s24, 10")
    e("s_add_u32 s25, s24, 1024")
    e("s_lshl_b32 s12, s15, 1")
    e("s_add_u32 s12, s12, s19")
    e("s_cmp_eq_u32 s12, 4")
    e("s_cselect_b32 s24, s25, s24")
    e("s_cselect_b32 s31, 4, 0")
    e("s_sub_u32 s12, s12, 3")
    e("s_cmp_lt_u32 s12, 2")
    e("s_cselect_b32 s25, 0x7f000000, s25")
    e("s_cselect_b32 s89, 1, 0")
    for u in range(4):
        e(f"v_add_u32 v{40+u}, {u*14336}, v2")
    e("v_mov_b64 v[14:15], 0")
    e("v_mov_b32 v12, 0")
    e("v_mov_b32 v13, 1")
    e("s_mov_b32 s50, 256"); e("s_mov_b32 s51, 0x00020000")
    e("s_mov_b32 s22, 1835008"); e("s_mov_b32 s23, 0x00020000")
    e("s_lshl_b32 s52, s14, 18")
    e(f"s_add_u32 s52, s52, 229376")
    e("s_lshl_b32 s53, s16, 2")
    e("s_add_u32 s53, s53, s15")
    e("s_waitcnt lgkmcnt(0)")
    e("s_mov_b32 s32, s42"); e("s_mov_b32 s33, s43")
    e("s_mov_b32 s20, s38"); e("s_mov_b32 s21, s39")
    e("s_mov_b32 s48, s40"); e("s_mov_b32 s49, s41")
    e("s_or_b32 s12, s53, s17")
    e("s_cmp_lg_u32 s12, 0")
    e("s_cbranch_scc1 L_noclear")
    e("s_mov_b64 exec, 1")
    e("buffer_store_dwordx2 v[14:15], v12, s[32:35], s52 offen sc1")
    e("s_waitcnt vmcnt(0)")
    e("s_lshl_b32 s12, s14, 2")
    e("buffer_store_dword v13, v12, s[48:51], s12 offen sc1")
    e("s_mov_b64 exec, -1")
    e.label("L_noclear")
    e("s_add_u32 s53, s53, s52")
    def touches():
        if TLBW:
            e("s_cmp_lg_u32 s17, 1")
            e("s_cbranch_scc1 L_tw2")
            e("s_mov_b64 exec, 1")
            e("s_add_u32 s12, s52, 256")
            e("buffer_load_dword v47, v12, s[32:35], s12 offen sc1")
            e("s_mov_b64 exec, -1")
            e.label("L_tw2")
            e("s_cmp_lg_u32 s17, 2")
            e("s_cbranch_scc1 L_tw3")
            e("s_mov_b64 exec, 1")
            e("s_mul_i32 s12, s14, 57344")
            e("buffer_load_dword v46, v12, s[20:23], s12 offen sc1")
            e("s_mov_b64 exec, -1")
            e.label("L_tw3")
            e("s_cmp_lg_u32 s17, 3")
            e("s_cbranch_scc1 L_tw4")
            if TLBW != 2:
                e("s_mov_b64 exec, 1")
                e("global_load_dword v46, v12, s[10:11]")
                e("global_load_dword v47, v12, s[36:37]")
            else:
                e("s_mov_b64 exec, 0xf")
                e("s_mul_i32 s12, s15, 100352")
                e("v_lshlrev_b32 v45, 15, v0")
                e("v_add_u32 v45, s12, v45")
                e("global_load_dword v46, v45, s[10:11]")
                e("global_load_dword v47, v45, s[36:37]")
            e("s_mov_b64 exec, -1")
            e.label("L_tw4")
            if TLBW == 3:
                e("s_load_dword s99, s[40:41], 128")
            if TLBW == 2:
                e("s_cmp_lg_u32 s17, 0")
                e("s_cbranch_scc1 L_tw5")
                e("s_mov_b32 exec_hi, 0")
                e("s_mul_i32 s12, s16, 917504")
                e("v_mul_u32_u24 v45, 28672, v0")
                e("v_add_u32 v45, s12, v45")
                e("global_load_dword v46, v45, s[4:5]")
                e("s_mov_b64 exec, -1")
                e.label("L_tw5")
    if TLBW and not TLATE: touches()
    AB = 16
    AC = 22
    e("v_and_b32 v5, 15, v0")
    e("v_lshrrev_b32 v12, 1, v5")
    e("v_xor_b32 v12, v12, v3")
    e("v_lshlrev_b32 v12, 4, v12")
    e("v_lshl_add_u32 v12, v5, 7, v12")
    e("s_lshl_b32 s12, s18, 13")
    e(f"v_add_u32 v{AB}, s12, v12")
    e(f"v_xor_b32 v{AB+1}, 64, v{AB}")
    e("v_bfe_u32 v5, v0, 2, 2")
    e("v_lshl_add_u32 v12, v3, 3, v5")
    e("v_lshlrev_b32 v12, 8, v12")
    e(f"v_add_u32 v12, {XOFF}, v12")
    e("v_and_b32 v13, 3, v0")
    e("v_lshrrev_b32 v14, 1, v13")
    e("v_xor_b32 v14, v14, v13")
    e("v_and_b32 v14, 1, v14")
    e("v_lshl_add_u32 v12, v14, 3, v12")
    e("v_and_b32 v14, 1, v3")
    e("v_lshlrev_b32 v14, 1, v14")
    e("v_xor_b32 v13, v13, v14")
    e("v_lshl_add_u32 v13, v5, 2, v13")
    e("s_lshl_b32 s12, s19, 3")
    e("s_xor_b32 s12, s12, s31")
    e("v_xor_b32 v13, s12, v13")
    for pp in range(2):
        e(f"v_xor_b32 v14, {4*pp}, v13")
        e(f"v_lshl_add_u32 v{AB+2+pp}, v14, 4, v12")
        e(f"v_xor_b32 v{AB+4+pp}, 8, v{AB+2+pp}")
    for t in range(6):
        e(f"v_mov_b32 v{AC+t}, v{AB+t}")
    ACC = 48; FR = 112
    def acc(T, u): return ACC + (T*4+u)*4
    def xf(buf, T): return FR + buf*32 + T*4
    def cf(buf, u): return FR + buf*32 + 16 + u*4
    for r in range(0, 64, 2):
        e(f"v_mov_b64 v[{ACC+r}:{ACC+r+1}], 0")
    e("v_mov_b32 v12, 0")
    e("v_mov_b32 v13, 1")
    e("s_mov_b32 vcc_lo, 0xffff0000")
    e("s_mov_b32 vcc_hi, 0x0000ffff")
    e("s_cmp_eq_u32 s18, 1")
    e("s_cselect_b32 s12, 0x80008000, 0")
    def reads(kk, NT=4):
        buf = kk
        out = []
        def xr(T):
            reg = AC + 2 + 2*(T & 1) + (T >> 1)
            for h in range(2):
                off = kk*8192 + h*1024
                d = xf(buf, T) + 2*h
                out.append((f"ds_read_b64_tr_b16 v[{d}:{d+1}], v{reg} offset:{off}", ("f", kk, "x", T)))
        def cr(u):
            d = cf(buf, u)
            out.append((f"ds_read_b128 v[{d}:{d+3}], v{AC+kk} offset:{u*2048}", ("f", kk, "c", u)))
        xr(0)
        for u in range(4): cr(u)
        for T in range(1, NT): xr(T)
        return out
    e("s_mov_b32 s28, 0")
    e("s_mov_b32 s29, 0")
    e.stamp()
    e("s_barrier")
    if TLBW and TLATE:
        e("s_mov_b32 s99, s12")
        touches()
        e("s_mov_b32 s12, s99")
    e.stamp()
    def mainloop(NT, lab):
        e.lg = []
        for s_, tag in reads(0, NT): e.lds(s_, tag)
        e.label(lab)
        for kk in range(2):
            nxt = reads(1 - kk, NT)
            ri = 0; mi = 0
            BARPOS = 3 if kk == 1 else 0
            nsl = NT*4
            for T in range(NT):
                for u in range(4):
                    e.wait_lg({("f", kk, "x", T), ("f", kk, "c", u)})
                    x = xf(kk, T); c = cf(kk, u); a = acc(T, u)
                    if not M32:
                        e(f"v_mfma_f32_16x16x32_bf16 v[{a}:{a+3}], v[{x}:{x+3}], v[{c}:{c+3}], v[{a}:{a+3}]")
                    elif u & 1:
                        a32 = ACC + ((T >> 1)*2 + (u >> 1))*16
                        e(f"v_mfma_f32_32x32x16_bf16 v[{a32}:{a32+15}], v[{x}:{x+3}], v[{c}:{c+3}], v[{a32}:{a32+15}]")
                    if kk == 1 and mi < 3:
                        if mi == 0:
                            e(f"s_add_u32 s29, s29, {SLOT}")
                            e(f"s_cmp_ge_u32 s29, {SLOT*NSLOT}")
                            e("s_cselect_b32 s29, 0, s29")
                        for t in range(2*mi, 2*mi+2):
                            e(f"v_add_u32 v{AC+t}, s29, v{AB+t}")
                    if kk == 1 and mi == BARPOS:
                        e.wait_lg_all()
                        e("s_barrier")
                    if mi >= BARPOS and ri < len(nxt):
                        n_ = 2 if ((kk == 1 and mi < BARPOS + 2) or NT == 2) else 1
                        for _ in range(n_):
                            if ri < len(nxt):
                                e.lds(*nxt[ri]); ri += 1
                    mi += 1
            assert ri == len(nxt)
        e("s_add_u32 s28, s28, 1")
        e("s_cmp_lt_u32 s28, 16")
        e(f"s_cbranch_scc1 {lab}")
    if SKIPH:
        e("s_cmp_eq_u32 s89, 1")
        e("s_cbranch_scc0 L_full")
        mainloop(2, "L_mainh")
        e("s_branch L_mdone")
        e.label("L_full")
    mainloop(4, "L_main")
    e.label("L_mdone")
    e.stamp()
    e("s_lshl_b32 s3, s14, 2")
    e("s_load_dword s30, s[40:41], s3")
    e("s_nop 2")
    tmp = 192
    for u in range(4):
        for pp in range(2):
            t = tmp; tmp += 8
            a = acc(2*pp, u); b = acc(2*pp+1, u)
            e(f"v_cvt_pk_bf16_f32 v{t}, v{a}, v{a+1}")
            e(f"v_cvt_pk_bf16_f32 v{t+1}, v{a+2}, v{a+3}")
            e(f"v_cvt_pk_bf16_f32 v{t+2}, v{b}, v{b+1}")
            e(f"v_cvt_pk_bf16_f32 v{t+3}, v{b+2}, v{b+3}")
            for r in range(4): e(f"v_xor_b32 v{t+r}, s12, v{t+r}")
            e(f"v_cndmask_b32 v{t+4}, v{t}, v{t+2}, vcc")
            e(f"v_cndmask_b32 v{t+5}, v{t+1}, v{t+3}, vcc")
            e(f"v_cndmask_b32 v{t+6}, v{t+2}, v{t}, vcc")
            e(f"v_cndmask_b32 v{t+7}, v{t+3}, v{t+1}, vcc")
            e(f"buffer_store_dwordx4 v[{t+4}:{t+7}], v{40+u}, s[32:35], s{24+pp} offen sc1")
    e.stamp()
    A2 = 32; PF = 88; HF = 200
    def acc2(T, u): return A2 + (T*2+u)*4
    e("s_waitcnt lgkmcnt(0)")
    e.lg = []
    e("v_and_b32 v4, 15, v0")
    e("v_lshrrev_b32 v5, 1, v4")
    e("s_lshl_b32 s24, s19, 2")
    e("v_add_u32 v6, s24, v3")
    e("v_xor_b32 v5, v5, v6")
    e("v_lshlrev_b32 v5, 4, v5")
    e("v_lshl_add_u32 v5, v4, 7, v5")
    e("s_lshl_b32 s24, s14, 18")
    e("s_mul_i32 s25, s16, 28672")
    e("s_add_u32 s24, s24, s25")
    e("s_lshl_b32 s25, s19, 10")
    e("s_add_u32 s24, s24, s25")
    rot2(e, 26)
    e("s_add_u32 s26, s26, s18")
    for idx in range(7):
        e(f"s_add_u32 s25, s26, {2*idx}")
        e("s_sub_u32 s27, s25, 14")
        e("s_cmp_ge_u32 s25, 14")
        e("s_cselect_b32 s25, s27, s25")
        e("s_sub_u32 s27, s25, 7")
        e("s_cmp_ge_u32 s25, 7")
        e("s_cselect_b32 s25, s27, s25")
        e(f"s_cselect_b32 s27, 57344, 0")
        e("s_lshl_b32 s25, s25, 11")
        e("s_add_u32 s25, s25, s27")
        e(f"s_add_u32 s{91+idx}, s25, s24")
    e("v_mov_b32 v24, v2")
    e("v_add_u32 v25, 14336, v2")
    e(f"v_add_u32 v26, 114688, v2")
    e(f"v_add_u32 v27, {114688+14336}, v2")
    e.vm = [("st",)]*8
    def pload(idx, track=True):
        for kp in range(2):
            for u in range(2):
                r = PF + (idx*4 + kp*2 + u)*4
                s_ = f"buffer_load_dwordx4 v[{r}:{r+3}], v{24+kp*2+u}, s[32:35], s{91+idx} offen sc1"
                if track: e.vmem(s_, ("p", idx))
                else: e(s_)
    e("s_cmp_eq_u32 s18, 1")
    for idx in range(7):
        e(f"s_mov_b32 s24, {HPOSN[2*idx]}")
        e(f"s_cselect_b32 s24, {HPOSN[1+2*idx]}, s24")
        e(f"v_add_u32 v{16+idx}, s24, v5")
    for r in range(0, 56, 2):
        e(f"v_mov_b64 v[{A2+r}:{A2+r+1}], 0")
    e.wait_vm_all()
    e.stamp()
    e("s_barrier")
    e("s_cmp_lg_u32 s17, 0")
    e("s_cbranch_scc1 L_nopoll")
    e("s_mov_b64 exec, 1")
    e("s_cmp_eq_u32 s30, 1")
    e("s_cbranch_scc0 L_clrslow")
    e.label("L_clrok")
    e("buffer_store_byte v13, v12, s[32:35], s53 offen sc1")
    if not POLL2:
        e("s_mov_b32 s28, 0")
        e.label("L_poll")
        e("buffer_load_dwordx2 v[14:15], v12, s[32:35], s52 offen sc1")
        e("s_add_u32 s28, s28, 1")
        e("s_waitcnt vmcnt(0)")
        e("v_and_b32 v14, v14, v15")
        e("s_nop 0")
        e("v_readfirstlane_b32 s12, v14")
        e("s_cmp_eq_u32 s12, 0x01010101")
        e("s_cbranch_scc1 L_pollx")
        if SLEEP: e(f"s_sleep {SLEEP}")
        e("s_cmp_lt_u32 s28, 0x400000")
        e("s_cbranch_scc1 L_poll")
    else:
        e("s_mov_b32 s28, 0")
        e("buffer_load_dwordx2 v[14:15], v12, s[32:35], s52 offen sc1")
        e.label("L_poll")
        for half in range(2):
            cur = 14 if half == 0 else 28
            oth = 28 if half == 0 else 14
            e(f"s_sleep {POLL2}")
            e(f"buffer_load_dwordx2 v[{oth}:{oth+1}], v12, s[32:35], s52 offen sc1")
            e("s_add_u32 s28, s28, 1")
            e("s_waitcnt vmcnt(1)")
            e(f"v_and_b32 v30, v{cur}, v{cur+1}")
            e("s_nop 0")
            e("v_readfirstlane_b32 s12, v30")
            e("s_cmp_eq_u32 s12, 0x01010101")
            e("s_cbranch_scc1 L_pollx")
        e("s_cmp_lt_u32 s28, 0x400000")
        e("s_cbranch_scc1 L_poll")
    e.label("L_pollx")
    e("s_mov_b64 exec, -1")
    e.label("L_nopoll")
    e("s_barrier")
    e.stamp()
    for idx in range(NPRE): pload(idx)
    def hreads(idx):
        out = []
        for T in range(7):
            d = HF + (idx & 1)*28 + T*4
            out.append((f"ds_read_b128 v[{d}:{d+3}], v{16+idx} offset:{T*2048}", ("h", idx, T)))
        return out
    if not PSUM:
        for s_, tag in hreads(0): e.lds(s_, tag)
        slow = []
        for idx in range(7):
            if idx == 1:
                e.wait_lg_all()
                e("s_barrier")
            if idx == 4:
                e("s_barrier")
            e.wait_vm({("p", idx)})
            if idx == 0: e.stamp()
            if idx + NPRE < 7: pload(idx + NPRE)
            nxt = hreads(idx+1) if idx < 6 else []
            ri = 0
            for T in range(7):
                e.wait_lg({("h", idx, T)})
                h = HF + (idx & 1)*28 + T*4
                for kp in range(2):
                    for u in range(2):
                        p = PF + (idx*4 + kp*2 + u)*4; a = acc2(T, u)
                        e(f"v_mfma_f32_16x16x32_bf16 v[{a}:{a+3}], v[{h}:{h+3}], v[{p}:{p+3}], v[{a}:{a+3}]")
                        if ri < len(nxt) and kp == 1 and u == 0:
                            e.lds(*nxt[ri]); ri += 1
            while ri < len(nxt):
                e.lds(*nxt[ri]); ri += 1
    else:
        for s_, tag in hreads(0): e.lds(s_, tag)
        e("s_mov_b32 s24, 0x05040100")
        e("s_mov_b32 s25, 0x07060302")
        e("v_mov_b32 v28, 0x3f803f80")
        def sums(idx):
            out = []
            for u in range(2):
                for r in range(4):
                    A = PF + (idx*4 + u)*4 + r; B = PF + (idx*4 + 2 + u)*4 + r
                    t0 = 4 + 2*(r & 1); t1 = t0 + 1
                    if PSUM == 1:
                        out.append(f"v_perm_b32 v{t0}, v{B}, v{A}, s24")
                        out.append(f"v_perm_b32 v{t1}, v{B}, v{A}, s25")
                        out.append(f"v_dot2_f32_bf16 v{t0}, v{t0}, v28, 0")
                        out.append(f"v_dot2_f32_bf16 v{t1}, v{t1}, v28, 0")
                        out.append("s_nop 2")
                        out.append(f"v_cvt_pk_bf16_f32 v{A}, v{t0}, v{t1}")
                    else:
                        t2 = 8 + 2*(r & 1); t3 = t2 + 1
                        out.append(f"v_lshlrev_b32 v{t0}, 16, v{A}")
                        out.append(f"v_and_b32 v{t1}, 0xffff0000, v{A}")
                        out.append(f"v_lshlrev_b32 v{t2}, 16, v{B}")
                        out.append(f"v_and_b32 v{t3}, 0xffff0000, v{B}")
                        out.append(f"v_add_f32 v{t0}, v{t0}, v{t2}")
                        out.append(f"v_add_f32 v{t1}, v{t1}, v{t3}")
                        out.append(f"v_cvt_pk_bf16_f32 v{A}, v{t0}, v{t1}")
            return out
        e.wait_vm({("p", 0)})
        e.stamp()
        if NPRE < 7: pload(NPRE)
        for s_ in sums(0): e(s_)
        for idx in range(7):
            if idx == 1:
                e.wait_lg_all()
                e("s_barrier")
            if idx == 4:
                e("s_barrier")
            va = []
            if idx < 6:
                e.wait_vm({("p", idx+1)})
                if idx + 1 + NPRE < 7: pload(idx + 1 + NPRE)
                va = sums(idx+1)
            else:
                e("s_nop 1")
            nxt = hreads(idx+1) if idx < 6 else []
            ri = 0; vi = 0
            per = -(-len(va) // 14)
            for T in range(7):
                e.wait_lg({("h", idx, T)})
                h = HF + (idx & 1)*28 + T*4
                for u in range(2):
                    p = PF + (idx*4 + u)*4; a_ = acc2(T, u)
                    e(f"v_mfma_f32_16x16x32_bf16 v[{a_}:{a_+3}], v[{h}:{h+3}], v[{p}:{p+3}], v[{a_}:{a_+3}]")
                    if ri < len(nxt) and u == 0:
                        e.lds(*nxt[ri]); ri += 1
                    for _ in range(per):
                        if vi < len(va):
                            e(va[vi]); vi += 1
            while ri < len(nxt):
                e.lds(*nxt[ri]); ri += 1
            while vi < len(va):
                e(va[vi]); vi += 1
            e("s_nop 1")
    e.vm = []; e.lg = []
    e.stamp()
    RS = 81920
    e("s_mul_i32 s48, s17, 14336")
    e(f"s_add_u32 s48, s48, {RS}")
    e("v_add_u32 v4, s48, v2")
    e("v_and_b32 v5, 15, v0")
    e("v_mul_u32_u24 v5, 896, v5")
    e("v_lshl_add_u32 v7, v3, 4, v5")
    e("v_lshl_add_u32 v8, v3, 3, v5")
    e("s_lshl_b32 s48, s14, 1")
    e("s_add_u32 s48, s48, s16")
    e("s_mul_i32 s48, s48, 28672")
    e("s_mul_i32 s49, s15, 224")
    e("s_add_u32 s48, s48, s49")
    for ii in range(2):
        e("s_lshl_b32 s24, s17, 1")
        if ii: e("s_add_u32 s24, s24, 1")
        e("s_sub_u32 s25, s24, 3")
        e("s_cmp_ge_u32 s24, 3")
        e("s_cselect_b32 s24, s25, s24")
        e("s_cselect_b32 s25, 1, 0")
        e("s_lshl_b32 s26, s24, 12")
        e("s_lshl_b32 s27, s25, 10")
        e("s_add_u32 s26, s26, s27")
        e(f"s_add_u32 s26, s26, {RS}")
        e(f"v_add_u32 v{10+ii}, s26, v2")
        e("s_mul_i32 s25, s25, 14336")
        e("s_lshl_b32 s24, s24, 6")
        e("s_add_u32 s24, s24, s25")
        e(f"s_add_u32 s{91+ii}, s24, s48")
    if not NOB20: e("s_barrier")
    for T in range(7):
        for u in range(2):
            a = acc2(T, u)
            e(f"ds_write_b128 v4, v[{a}:{a+3}] offset:{(T*2+u)*1024}")
    e("s_waitcnt lgkmcnt(0)")
    e("s_barrier")
    e("s_cmp_eq_u32 s17, 3")
    e("s_cbranch_scc1 L_fin3")
    def red(r, o):
        for q in range(4):
            e(f"v_add_f32 v{r+q}, v{r+q}, v{r+4+q}")
            e(f"v_add_f32 v{r+8+q}, v{r+8+q}, v{r+12+q}")
        for q in range(4):
            e(f"v_add_f32 v{r+q}, v{r+q}, v{r+8+q}")
        e(f"v_cvt_pk_bf16_f32 v{o}, v{r}, v{r+1}")
        e(f"v_cvt_pk_bf16_f32 v{o+1}, v{r+2}, v{r+3}")
    for ii in range(2):
        for ti in range(2):
            for ww in range(4):
                r = 88 + ii*32 + (ti*4+ww)*4
                e(f"ds_read_b128 v[{r}:{r+3}], v{10+ii} offset:{ww*14336 + ti*2048}")
    for ii in range(2):
        e(f"s_waitcnt lgkmcnt({8 if ii == 0 else 0})")
        for ti in range(2):
            red(88 + ii*32 + ti*16, 160 + ii*4 + 2*ti)
        e(f"buffer_store_dwordx4 v[{160+ii*4}:{163+ii*4}], v7, s[20:23], s{91+ii} offen {OUTF}")
    e("s_branch L_end")
    e.label("L_fin3")
    e(f"v_add_u32 v10, {RS + 12*1024}, v2")
    e("s_add_u32 s49, s48, 14336")
    for u in range(2):
        for ww in range(4):
            r = 88 + u*16 + ww*4
            e(f"ds_read_b128 v[{r}:{r+3}], v10 offset:{ww*14336 + u*1024}")
    e("s_waitcnt lgkmcnt(0)")
    for u in range(2):
        red(88 + u*16, 160 + 2*u)
        e(f"buffer_store_dwordx2 v[{160+2*u}:{161+2*u}], v8, s[20:23], s{48+u} offen offset:192 {OUTF}")
    e.label("L_end")
    if STAMP:
        e("s_waitcnt vmcnt(0)")
        e.nst = max(nst_l, e.nst)
        e.stamp()
        e.stamp_flush()
    e.label("L_done")
    e("s_endpgm")
    e.label("L_clrslow")
    e("s_sleep 8")
    e("buffer_load_dword v14, v12, s[48:51], s3 offen sc1")
    e("s_add_u32 s28, s28, 1")
    e("s_waitcnt vmcnt(0)")
    e("v_readfirstlane_b32 s30, v14")
    e("s_cmp_eq_u32 s30, 1")
    e("s_cbranch_scc1 L_clrok")
    e("s_cmp_lt_u32 s28, 0x400000")
    e("s_cbranch_scc1 L_clrslow")
    e("s_branch L_clrok")
    e.label("L_codeend")
    return e.text()

hdr = open("standalone__spectral_fnet__prompt.s.ref").read().split("; Override")[0]
out = hdr
out += f"; @launch grid=(256,1,1) block=(384,1,1) lds=163840\n"
out += '.amdgcn_target "amdgcn-amd-amdhsa--gfx950"\n.text\n'
out += gen()
out += f'''.section .rodata,"a"
.p2align 6
.amdhsa_kernel {NAME}
  .amdhsa_next_free_vgpr 256
  .amdhsa_next_free_sgpr 102
  .amdhsa_accum_offset 256
  .amdhsa_group_segment_fixed_size 0
  .amdhsa_kernarg_size 64
  .amdhsa_user_sgpr_count 2
  .amdhsa_user_sgpr_kernarg_segment_ptr 1
  .amdhsa_system_sgpr_workgroup_id_x 1
.end_amdhsa_kernel
'''
open(sys.argv[1], "w").write(out)
```
